```python
import torch

def _softmax(x, axis=-1):
    return torch.softmax(x, dim=axis)
def _gelu(x):
    return torch.nn.functional.gelu(x, approximate="tanh")
def _silu(x):
    return torch.nn.functional.silu(x)
def _sigmoid(x):
    return torch.sigmoid(x)
def _layernorm(x, axis=-1, eps=1e-5):
    m = x.mean(dim=axis, keepdim=True)
    v = x.var(dim=axis, keepdim=True, unbiased=False)
    return (x - m) / torch.sqrt(v + eps)
def _scatter_add(tgt, idx, src, axis=0):
    return tgt.clone().index_add_(axis, idx, src)
def _segment_sum(src, seg, n):
    out = torch.zeros((n,) + src.shape[1:], dtype=src.dtype)
    return out.index_add_(0, seg, src)
def _pad(x, pw):
    flat = tuple(v for pair in reversed(pw) for v in pair)
    return torch.nn.functional.pad(x, flat)

kernel_name = 'standalone__gqa_softmax__prompt'

def setup_inputs():

    _w = (lambda a: (lambda t: t.to(torch.bfloat16) if t.is_floating_point() else t)(torch.as_tensor(a)))
    B, Hq, Hkv, Sq, Sk, D = 1, 32, 32, 2048, 2048, 128
    return {
        "q": _w((lambda *s: torch.randn(*s, dtype=torch.bfloat16) * 0.8)(B, Hq, Sq, D)),
        "k": _w((lambda *s: torch.randn(*s, dtype=torch.bfloat16) * 0.8)(B, Hkv, Sk, D)),
        "v": _w((lambda *s: torch.randn(*s, dtype=torch.bfloat16) * 0.05)(B, Hkv, Sk, D)),
    }

def reference(q, k, v):
    B, Hq, Sq, D = q.shape
    Hkv = k.shape[1]
    rep = Hq // Hkv
    k = (lambda x, n, axis: torch.repeat_interleave(x, n, dim=axis))(k, rep, axis=1)
    v = (lambda x, n, axis: torch.repeat_interleave(x, n, dim=axis))(v, rep, axis=1)
    scale = D ** -0.5
    scores = torch.einsum("bhqd,bhkd->bhqk", q, k) * scale
    p = _softmax(scores, axis=-1)
    return torch.einsum("bhqk,bhkd->bhqd", p, v)
```

```python
import math
import sys

from ir import *

NAME = "standalone__gqa_softmax__prompt"

S_BASE = [0, 64]
P_BASE = [128, 160]
NEGM = 192
KADDR = 224
VADDR = 232
DMAK = 236
DMAV = 240
LSUM = 241
TSUM = 243
QOFF = 245
T = 246

OB = 0
QB = 128
KF = 192
VF = 224
NKS = 8
NVS = 8

SRD_Q, SRD_K, SRD_V, SRD_O = S(4, 4), S(8, 4), S(12, 4), S(16, 4)
sW = S(28)
sHEAD = S(29)
sQBLK = S(30)
sQROW = S(31)
sHB = S(32)
sKDMA = S(33)
sVDMA = S(34)
sKSOFT = S(35)
sM0K = 36
sM0V = 39
sLOOP = S(42)
sTHR = S(43)
sC = S(44)
sT0 = S(45)
sT1 = S(46)
sT2 = S(47)
sQROW1 = S(48)

LDS_V = 49152
TILE = 16384


class Gen:
    def __init__(self, opts):
        self.o = opts
        self.seq = []

    def e(self, ins):
        self.seq.append(ins)
        return ins

    def valu(self, op, d, *srcs, mods=""):
        return self.e(mk(op, [d], list(srcs), mods=mods))

    def salu(self, op, d, *srcs):
        return self.e(mk(op, [d], list(srcs)))

    def pad(self, n):
        while n > 0:
            k = min(n, 16)
            self.e(nop(k - 1))
            n -= k

    def prologue(self):
        e = self.e
        e(raw("s_cmp_ge_u32 s2, 256"))
        e(raw("s_cbranch_scc1 L_end", "branch"))
        e(raw("s_load_dwordx8 s[20:27], s[0:1], 0", "smem", writes=S(20, 8).regs()))
        vLANE, vL31, vH, vX15, vB0, vRI, vLR, vP = [V(T + i) for i in range(8)]
        tmp = V(T + 8)
        tmp2 = V(T + 9)
        self.valu("v_and_b32", vLANE, 63, V(0))
        self.valu("v_lshrrev_b32", tmp, 6, V(0))
        self.valu("v_and_b32", vL31, 31, V(0))
        self.valu("v_readfirstlane_b32", sW, tmp)
        self.valu("v_lshrrev_b32", vH, 5, vLANE)
        self.valu("v_and_b32", vX15, 15, vL31)
        self.valu("v_lshlrev_b32", vB0, 8, vL31)
        for ks in range(8):
            self.valu("v_add_u32", tmp, 2 * ks, vH)
            self.valu("v_xor_b32", tmp, tmp, vX15)
            self.valu("v_lshl_add_u32", V(KADDR + ks), tmp, 4, vB0)
        self.valu("v_lshl_add_u32", V(QOFF), vH, 4, vB0)
        self.valu("v_and_b32", tmp, 15, vLANE)
        self.valu("v_lshrrev_b32", vRI, 2, tmp)
        self.valu("v_lshlrev_b32", tmp, 2, vH)
        self.valu("v_add_u32", tmp, tmp, vRI)
        self.valu("v_lshlrev_b32", tmp, 8, tmp)
        self.valu("v_lshrrev_b32", tmp2, 4, vLANE)
        self.valu("v_and_b32", tmp2, 1, tmp2)
        self.valu("v_lshl_add_u32", tmp, tmp2, 5, tmp)
        self.valu("v_and_b32", tmp2, 3, vLANE)
        self.valu("v_lshl_add_u32", tmp, tmp2, 3, tmp)
        self.valu("v_add_u32", tmp, LDS_V, tmp)
        for db in range(4):
            self.valu("v_xor_b32", tmp2, db, vRI)
            self.valu("v_lshl_add_u32", V(VADDR + db), tmp2, 6, tmp)
        self.valu("v_lshrrev_b32", vLR, 4, vLANE)
        self.valu("v_and_b32", vP, 15, vLANE)
        self.valu("v_lshlrev_b32", tmp, 8, vLR)
        self.valu("v_lshrrev_b32", tmp2, 6, V(0))
        self.valu("v_lshl_add_u32", tmp, tmp2, 12, tmp)
        for t in range(4):
            self.valu("v_add_u32", tmp2, 4 * t, vLR)
            self.valu("v_xor_b32", tmp2, tmp2, vP)
            self.valu("v_lshl_add_u32", V(DMAK + t), tmp2, 4, tmp)
        self.valu("v_lshlrev_b32", tmp2, 2, vLR)
        self.valu("v_xor_b32", tmp2, tmp2, vP)
        self.valu("v_lshl_add_u32", V(DMAV), tmp2, 4, tmp)
        e(raw("s_and_b32 s29, s2, 7", writes=[("s", 29)]))
        e(raw("s_lshl_b32 s29, s29, 2", writes=[("s", 29)]))
        e(raw("s_lshr_b32 s30, s2, 6", writes=[("s", 30)]))
        e(raw("s_add_u32 s29, s29, s30", writes=[("s", 29)]))
        e(raw("s_lshr_b32 s30, s2, 3", writes=[("s", 30)]))
        e(raw("s_and_b32 s30, s30, 7", writes=[("s", 30)]))
        e(raw("s_lshl_b32 s32, s29, 19", writes=[("s", 32)]))
        e(raw("s_lshl_b32 s31, s30, 16", writes=[("s", 31)]))
        e(raw("s_add_u32 s31, s31, s32", writes=[("s", 31)]))
        e(raw("s_lshl_b32 s45, s28, 14", writes=[("s", 45)]))
        e(raw("s_add_u32 s31, s31, s45", writes=[("s", 31)]))
        e(raw("s_add_u32 s48, s31, 8192", writes=[("s", 48)]))
        e(raw("s_lshl_b32 s45, s28, 12", writes=[("s", 45)]))
        for sl in range(3):
            e(raw(f"s_add_u32 s{sM0K + sl}, s45, {sl * TILE}", writes=[("s", sM0K + sl)]))
            e(raw(f"s_add_u32 s{sM0V + sl}, s45, {LDS_V + sl * TILE}", writes=[("s", sM0V + sl)]))
        e(raw("s_mov_b32 s43, 0x44800000", writes=[("s", 43)]))
        cbits = float_bits(math.log2(math.e) / math.sqrt(128.0))
        e(raw(f"s_mov_b32 s44, 0x{cbits:08x}", writes=[("s", 44)]))
        e(wait(lgkm=0))
        for srd, p in ((4, 20), (8, 22), (12, 24), (16, 26)):
            e(raw(f"s_mov_b32 s{srd}, s{p}", writes=[("s", srd)]))
            e(raw(f"s_mov_b32 s{srd + 1}, s{p + 1}", writes=[("s", srd + 1)]))
            e(raw(f"s_mov_b32 s{srd + 2}, 0x1000000", writes=[("s", srd + 2)]))
            e(raw(f"s_mov_b32 s{srd + 3}, 0x00020000", writes=[("s", srd + 3)]))
        for f in range(16):
            qh, ks = f >> 3, f & 7
            e(bload(V(4 * f, 4), V(QOFF), SRD_Q, sQROW if qh == 0 else sQROW1, 32 * ks))
        self.slow_k_loads(sHB)
        e(raw("s_add_u32 s33, s32, %d" % (2 * TILE), writes=[("s", 33)]))
        e(raw("s_mov_b32 s34, s32", writes=[("s", 34)]))
        for kt, vt in ((2, 0), (3, 1)):
            e(raw(f"s_mov_b32 m0, s{sM0K + kt % 3}", writes=[("m0", 0)]))
            e(nop(0))
            for t in range(4):
                e(dma(V(DMAK + t), SRD_K, sKDMA, 1024 * t))
            e(raw(f"s_mov_b32 m0, s{sM0V + vt % 3}", writes=[("m0", 0)]))
            e(nop(0))
            for t in range(4):
                e(dma(V(DMAV), SRD_V, sVDMA, 1024 * t))
            e(raw("s_add_u32 s33, s33, %d" % TILE, writes=[("s", 33)]))
            e(raw("s_add_u32 s34, s34, %d" % TILE, writes=[("s", 34)]))
        for i in range(128):
            e(mk("v_accvgpr_write_b32", [A(OB + i)], [0]))
        for i in range(32):
            self.valu("v_mov_b32", V(NEGM + i), 0)
        e(wait(vm=32))
        ts = [V(T + i) for i in range(9)]
        k = 0
        for f in range(16):
            for d in range(4):
                src = V(4 * f + d)
                t0, t1, t2 = ts[k], ts[k + 1], ts[k + 2]
                k = (k + 3) % 9
                self.valu("v_lshlrev_b32", t0, 16, src)
                self.valu("v_and_b32", t1, "0xffff0000", src)
                self.valu("v_mul_f32", t0, sC, t0)
                self.valu("v_mul_f32", t1, sC, t1)
                self.valu("v_cvt_pk_bf16_f32", t2, t0, t1)
                e(mk("v_accvgpr_write_b32", [A(QB + 4 * f + d)], [t2]))
        e(wait(vm=16))
        self.pad(2)
        self.slow_qk_mfma(S_BASE[0], first=True)
        e(raw("s_add_u32 s45, s32, %d" % TILE, writes=[("s", 45)]))
        self.slow_k_loads(sT0)
        self.pad(16)
        self.slow_softmax(S_BASE[0], P_BASE[0], first=True, fix=None)
        self.valu("v_mov_b32", V(LSUM), V(TSUM))
        self.valu("v_mov_b32", V(LSUM + 1), V(TSUM + 1))
        e(wait(vm=0))
        self.pad(2)
        self.slow_qk_mfma(S_BASE[1], first=False)
        e(raw("s_add_u32 s35, s32, %d" % TILE, writes=[("s", 35)]))
        e(raw("s_barrier", "barrier"))
        self.lq = []
        self.k_prefetch(2)

    def k_prefetch(self, slot):
        for f in range(4):
            self.e(dsr128(A(KF + 4 * (f % NKS), 4), V(KADDR + f), slot * TILE, tag=("K", f)))
            self.lq.append(("K", f))

    def slow_k_loads(self, soff):
        self.e(raw(f"s_add_u32 s46, {soff}, 8192", writes=[("s", 46)]))
        for f in range(16):
            kh, ks = f >> 3, f & 7
            self.e(bload(A(KF + 4 * f, 4), V(QOFF), SRD_K, soff if kh == 0 else sT1, 32 * ks))

    def slow_qk_mfma(self, sb, first):
        for f in range(16):
            kh, ks = f >> 3, f & 7
            for qh in range(2):
                D = V(sb + (kh * 2 + qh) * 16, 16)
                if ks == 0:
                    C = 0 if first else V(NEGM + 16 * qh, 16)
                else:
                    C = D
                self.e(mfma(D, A(KF + 4 * f, 4), A(QB + (qh * 8 + ks) * 4, 4), C))

    def slow_softmax(self, sb, pb, first, fix):
        dl = [V(T + 0), V(T + 1)]
        tA, tB = V(T + 2), V(T + 3)
        fq = [V(T + 4), V(T + 5)]
        for qh in range(2):
            regs = [V(sb + (kh * 2 + qh) * 16 + r) for kh in range(2) for r in range(16)]
            m = dl[qh]
            self.valu("v_max3_f32", m, regs[0], regs[1], regs[2])
            i = 3
            while i + 1 < 32:
                self.valu("v_max3_f32", m, m, regs[i], regs[i + 1])
                i += 2
            self.valu("v_max_f32", m, m, regs[31])
            self.valu("v_mov_b32", tA, m)
            self.valu("v_mov_b32", tB, m)
            self.pad(2)
            self.e(permswap(tA, tB))
            self.pad(2)
            self.valu("v_max_f32", m, tA, tB)
            if not first:
                self.valu("v_max_f32", m, 0, m)
        if not first:
            for qh in range(2):
                self.e(mk("v_exp_f32_e64", [fq[qh]], [Neg(dl[qh])]))
            self.pad(2)
            for qh in range(2):
                self.valu("v_mul_f32", V(LSUM + qh), V(LSUM + qh), fq[qh])
            tt = [V(T + 6), V(T + 7), V(T + 8), V(T + 9)]
            k = 0
            for db in range(4):
                for qh in range(2):
                    for r in range(16):
                        ar = A(OB + (db * 2 + qh) * 16 + r)
                        t = tt[k]
                        k = (k + 1) % 4
                        self.e(mk("v_accvgpr_read_b32", [t], [ar]))
                        self.pad(1)
                        self.valu("v_mul_f32", t, t, fq[qh])
                        self.pad(1)
                        self.e(mk("v_accvgpr_write_b32", [ar], [t]))
        for qh in range(2):
            for r in range(16):
                self.valu("v_sub_f32", V(NEGM + 16 * qh + r), V(NEGM + 16 * qh + r), dl[qh])
        for kh in range(2):
            for qh in range(2):
                for r in range(16):
                    x = V(sb + (kh * 2 + qh) * 16 + r)
                    self.valu("v_sub_f32", x, x, dl[qh])
        for kh in range(2):
            for qh in range(2):
                for r in range(16):
                    x = V(sb + (kh * 2 + qh) * 16 + r)
                    self.e(mk("v_exp_f32", [x], [x]))
        self.pad(1)
        for qh in range(2):
            regs = [V(sb + (kh * 2 + qh) * 16 + r) for kh in range(2) for r in range(16)]
            self.valu("v_add_f32", V(TSUM + qh), regs[0], regs[1])
            for x in regs[2:]:
                self.valu("v_add_f32", V(TSUM + qh), V(TSUM + qh), x)
        for kh in range(2):
            for qh in range(2):
                for r in range(0, 16, 2):
                    t = 2 * kh + (r >> 3)
                    d = V(pb + (t * 2 + qh) * 4 + ((r & 7) >> 1))
                    x0 = V(sb + (kh * 2 + qh) * 16 + r)
                    x1 = V(sb + (kh * 2 + qh) * 16 + r + 1)
                    self.valu("v_cvt_pk_bf16_f32", d, x0, x1)
        if fix is not None:
            for kh in range(2):
                for qh in range(2):
                    for r in range(16):
                        x = V(fix + (kh * 2 + qh) * 16 + r)
                        self.valu("v_sub_f32", x, x, dl[qh])

    def softmax_fifo(self, Ss, Pw):
        ops = []
        nel = 64

        def reg(e):
            kh, r, qh = e >> 5, (e >> 1) & 15, e & 1
            return V(Ss + (kh * 2 + qh) * 16 + r)

        cnt = [0, 0]

        def add_op(e):
            qh = e & 1
            if cnt[qh] == 0:
                cnt[qh] = 1
                return
            if cnt[qh] == 1:
                first = reg(e - 2)
                ops.append(mk("v_add_f32", [V(TSUM + qh)], [first, reg(e)]))
            else:
                ops.append(mk("v_add_f32", [V(TSUM + qh)], [V(TSUM + qh), reg(e)]))
            cnt[qh] += 1
            kh, r = e >> 5, (e >> 1) & 15
            if r & 1:
                t = 2 * kh + (r >> 3)
                d = V(Pw + (t * 2 + qh) * 4 + ((r & 7) >> 1))
                ops.append(mk("v_cvt_pk_bf16_f32", [d], [reg(e - 2), reg(e)]))

        for e in range(nel):
            ops.append(mk("v_exp_f32", [reg(e)], [reg(e)]))
            if e >= 1:
                add_op(e - 1)
        add_op(nel - 1)
        return ops

    def iteration(self, im6, kind):
        o = self.o
        par = im6 & 1
        Sq = S_BASE[par]
        Ss = S_BASE[par ^ 1]
        Pw = P_BASE[par ^ 1]
        Pr = P_BASE[par]
        sK = (im6 + 2) % 3
        sV = im6 % 3
        sKn = (im6 + 3) % 3
        dK = (im6 + 1) % 3
        dV = (im6 + 2) % 3
        do_qk = kind == "full"
        do_sm = kind in ("full", "noqk")
        mf = []
        if do_qk:
            for n in range(32):
                kh, ks, qh, f = n >> 4, (n >> 1) & 7, n & 1, n >> 1
                D = V(Sq + (kh * 2 + qh) * 16, 16)
                C = V(NEGM + 16 * qh, 16) if ks == 0 else D
                need = [("K", f), ("K", f + 1)] if n % 4 == 0 else []
                mf.append((mfma(D, A(KF + 4 * (f % NKS), 4), A(QB + (qh * 8 + ks) * 4, 4), C), need))
        pvb = len(mf)
        for j in range(32):
            g, qh = j >> 1, j & 1
            t, db = g >> 2, g & 3
            D = A(OB + (db * 2 + qh) * 16, 16)
            need = [("V", g), ("V", g + 1)] if j % 4 == 0 else []
            mf.append((mfma(D, A(VF + 4 * (g % NVS), 4), V(Pr + (t * 2 + qh) * 4, 4), D), need))
        nm = len(mf)
        fixed = {}

        def put(gap, ins):
            fixed.setdefault(max(gap, -1), []).append(ins)

        if do_qk:
            for f in range(4, 16):
                kh, ks = f >> 3, f & 7
                put(2 * f - o["k_la"], dsr128(A(KF + 4 * (f % NKS), 4), V(KADDR + ks), sK * TILE + kh * 8192, tag=("K", f)))
        for g in range(16):
            t, db = g >> 2, g & 3
            base = pvb + 2 * g - o["v_la"]
            put(base, dsrtr(A(VF + 4 * (g % NVS), 2), V(VADDR + db), sV * TILE + t * 4096, tag=("V", g)))
            put(base + 1, dsrtr(A(VF + 4 * (g % NVS) + 2, 2), V(VADDR + db), sV * TILE + t * 4096 + 2048, tag=("V", g)))
        bar_gap = nm - 8 if kind != "last" else None
        if kind == "full":
            put(1, raw(f"s_mov_b32 m0, s{sM0K + dK}", writes=[("m0", 0)]))
            for t in range(4):
                put(2 + 2 * t, dma(V(DMAK + t), SRD_K, sKDMA, 1024 * t))
            put(9, raw(f"s_mov_b32 m0, s{sM0V + dV}", writes=[("m0", 0)]))
            for t in range(4):
                put(10 + 2 * t, dma(V(DMAV), SRD_V, sVDMA, 1024 * t))
            put(18, raw("s_add_u32 s33, s33, %d" % TILE, writes=[("s", 33)]))
            put(19, raw("s_add_u32 s34, s34, %d" % TILE, writes=[("s", 34)]))
        fifo = self.softmax_fifo(Ss, Pw) if do_sm else []
        check_done = not do_sm

        for ins in fixed.get(-1, []):
            self.emit_ds(ins)
        for n, (m, need) in enumerate(mf):
            self.need(need)
            self.e(m)
            budget = o["budget"]
            nxt_need = mf[n + 1][1] if n + 1 < nm else []
            if any(t in self.lq for t in nxt_need):
                budget -= 4
            for ins in fixed.get(n, []):
                if ins.kind == "ds":
                    self.emit_ds(ins)
                else:
                    self.e(ins)
                budget -= ins.cost
            if n == bar_gap:
                self.e(wait(vm=8 if kind == "full" else 0, lgkm=0))
                self.lq = []
                self.e(raw("s_barrier", "barrier"))
                budget -= 8
                if kind == "full":
                    pass
            if kind == "full" and bar_gap is not None and bar_gap < n <= bar_gap + 4:
                f = n - bar_gap - 1
                self.e(dsr128(A(KF + 4 * (f % NKS), 4), V(KADDR + f), sKn * TILE, tag=("K", f)))
                self.lq.append(("Kn", f))
                budget -= 4
            while fifo and fifo[0].cost <= budget:
                ins = fifo.pop(0)
                self.e(ins)
                budget -= ins.cost
            if not fifo and not check_done and budget >= 8:
                self.valu("v_max_f32", V(T), V(TSUM), V(TSUM + 1))
                self.valu("v_cmp_lt_f32", "vcc", sTHR, V(T))
                check_done = True
        if kind == "full":
            assert not fifo, "softmax ops did not fit: %d left" % len(fifo)
        while fifo:
            self.e(fifo.pop(0))
        if not check_done:
            self.valu("v_max_f32", V(T), V(TSUM), V(TSUM + 1))
            self.valu("v_cmp_lt_f32", "vcc", sTHR, V(T))
        self.lq = [("K", t[1]) if t[0] == "Kn" else t for t in self.lq]

    def emit_ds(self, ins):
        self.e(ins)
        self.lq.append(ins.tag)

    def need(self, tags):
        idx = -1
        for t in tags:
            for k in range(len(self.lq) - 1, -1, -1):
                if self.lq[k] == t:
                    idx = max(idx, k)
                    break
        if idx >= 0:
            n = len(self.lq) - 1 - idx
            assert n <= 15
            self.e(wait(lgkm=n))
            self.lq = self.lq[idx + 1:]

    def rare(self, name, ret, im6, kind):
        par = im6 & 1
        Ss = S_BASE[par ^ 1]
        Pw = P_BASE[par ^ 1]
        Sq = S_BASE[par] if kind == "full" else None
        sKn = (im6 + 3) % 3
        self.e(label(name))
        self.pad(20)
        self.e(wait(vm=0, lgkm=0))
        self.slow_k_loads(sKSOFT)
        self.e(wait(vm=0))
        self.pad(2)
        self.slow_qk_mfma(Ss, first=False)
        self.pad(20)
        self.slow_softmax(Ss, Pw, first=False, fix=Sq)
        self.valu("v_add_f32", V(LSUM), V(LSUM), V(TSUM))
        self.valu("v_add_f32", V(LSUM + 1), V(LSUM + 1), V(TSUM + 1))
        self.pad(8)
        if kind == "full":
            save = self.lq
            self.lq = []
            self.k_prefetch(sKn)
            self.lq = save
        self.e(raw(f"s_branch {ret}", "branch"))

    def epilogue(self):
        e = self.e
        self.pad(20)
        inv = [V(T + 0), V(T + 1)]
        tA, tB = V(T + 2), V(T + 3)
        for qh in range(2):
            self.valu("v_mov_b32", tA, V(LSUM + qh))
            self.valu("v_mov_b32", tB, V(LSUM + qh))
            self.pad(2)
            e(permswap(tA, tB))
            self.pad(2)
            self.valu("v_add_f32", tA, tA, tB)
            self.e(mk("v_rcp_f32", [inv[qh]], [tA]))
        self.pad(2)
        k = 0
        for qh in range(2):
            so = sQROW if qh == 0 else sQROW1
            for db in range(4):
                for gp in range(2):
                    base = (k % 4) * 16
                    k += 1
                    tr = [V(base + i) for i in range(8)]
                    outr = V(base + 8, 4)
                    for i in range(8):
                        e(mk("v_accvgpr_read_b32", [tr[i]], [A(OB + (db * 2 + qh) * 16 + 8 * gp + i)]))
                    self.pad(1)
                    for i in range(8):
                        self.valu("v_mul_f32", tr[i], tr[i], inv[qh])
                    for i in range(4):
                        self.valu("v_cvt_pk_bf16_f32", outr.sub(i), tr[2 * i], tr[2 * i + 1])
                    self.pad(2)
                    e(permswap(outr.sub(0), outr.sub(2)))
                    e(permswap(outr.sub(1), outr.sub(3)))
                    self.pad(1)
                    e(bstore(outr, V(QOFF), SRD_O, so, 64 * db + 32 * gp))

    def build(self):
        self.prologue()
        e = self.e
        e(raw("s_mov_b32 s42, 0", writes=[("s", 42)]))
        e(label("L_loop"))
        loop_lq = list(self.lq)
        rares = []
        for im6 in range(6):
            self.iteration(im6, "full")
            e(raw(f"s_cbranch_vccnz L_rare{im6}", "branch", reads=[("vcc", 0)]))
            e(label(f"L_ret{im6}"))
            rares.append((f"L_rare{im6}", f"L_ret{im6}", im6, "full", list(self.lq)))
            self.lsum_update()
        assert self.lq == loop_lq, (self.lq, loop_lq)
        e(raw("s_add_u32 s42, s42, 1", writes=[("s", 42)]))
        e(raw("s_cmp_lt_u32 s42, 5"))
        e(raw("s_cbranch_scc1 L_loop", "branch"))
        self.iteration(0, "noqk")
        e(raw("s_cbranch_vccnz L_rareT", "branch", reads=[("vcc", 0)]))
        e(label("L_retT"))
        rares.append(("L_rareT", "L_retT", 0, "noqk", list(self.lq)))
        self.lsum_update()
        self.iteration(1, "last")
        self.epilogue()
        e(label("L_end"))
        e(raw("s_endpgm", "branch"))
        main_lq = self.lq
        for name, ret, im6, kind, lq in rares:
            self.lq = lq
            self.rare(name, ret, im6, kind)
        self.lq = main_lq

    def lsum_update(self):
        self.valu("v_add_f32", V(LSUM), V(LSUM), V(TSUM))
        self.valu("v_add_f32", V(LSUM + 1), V(LSUM + 1), V(TSUM + 1))
        self.e(raw("s_add_u32 s35, s35, %d" % TILE, writes=[("s", 35)]))

    def text(self):
        out = []
        for ins in self.seq:
            if ins.kind == "label":
                out.append(ins.text)
            else:
                out.append("    " + ins.text)
        return "\n".join(out)


def float_bits(x):
    import struct

    return struct.unpack("<I", struct.pack("<f", x))[0]


HEADER = """; Kernarg layout for this problem (48 bytes, ptrs only, base s[0:1]):
;   offset  24: d_out     shape=(1, 32, 2048, 128) dtype=bfloat16 (2 bytes/elem)
; grid=ceil(out_elems/256), lds=0). Harness parses it; keep it on one line.
; @launch grid=(256,1,1) block=(256,1,1) lds=98304
.amdgcn_target "amdgcn-amd-amdhsa--gfx950"
.text
.globl standalone__gqa_softmax__prompt_kernel
.p2align 8
.type standalone__gqa_softmax__prompt_kernel,@function
standalone__gqa_softmax__prompt_kernel:
"""

FOOTER = """
.section .rodata,"a"
.p2align 6
.amdhsa_kernel standalone__gqa_softmax__prompt_kernel
  .amdhsa_next_free_vgpr 512
  .amdhsa_next_free_sgpr 64
  .amdhsa_accum_offset 256
  .amdhsa_group_segment_fixed_size 0
  .amdhsa_kernarg_size 48
  .amdhsa_user_sgpr_count 2
  .amdhsa_user_sgpr_kernarg_segment_ptr 1
  .amdhsa_system_sgpr_workgroup_id_x 1
.end_amdhsa_kernel
"""


def main():
    opts = dict(k_la=7, v_la=11, budget=24)
    out = "cdna_kernels/%s.s" % NAME
    for a in sys.argv[1:]:
        if "=" in a:
            k, v = a.split("=")
            if k == "out":
                out = v
            else:
                opts[k] = int(v)
    g = Gen(opts)
    g.build()
    body = g.text()
    open(out, "w").write(HEADER + body + "\n" + FOOTER)
    n = sum(1 for i in g.seq if i.kind != "label")
    print("instructions:", n, "->", out)
    return g


if __name__ == "__main__":
    main()
```

```python
class R:
    __slots__ = ("f", "i", "n")

    def __init__(s, f, i, n=1):
        s.f = f
        s.i = i
        s.n = n

    def __str__(s):
        return f"{s.f}{s.i}" if s.n == 1 else f"{s.f}[{s.i}:{s.i + s.n - 1}]"

    def regs(s):
        return [(s.f, s.i + k) for k in range(s.n)]

    def sub(s, k, n=1):
        assert k + n <= s.n
        return R(s.f, s.i + k, n)


def V(i, n=1):
    return R("v", i, n)


def A(i, n=1):
    return R("a", i, n)


def S(i, n=1):
    return R("s", i, n)


class Neg:
    def __init__(s, r):
        s.r = r

    def __str__(s):
        return "-" + str(s.r)


def _regs(x):
    if isinstance(x, R):
        return x.regs()
    if isinstance(x, Neg):
        return x.r.regs()
    if x == "vcc":
        return [("vcc", 0)]
    if x == "m0":
        return [("m0", 0)]
    return []


class Ins:
    __slots__ = ("text", "kind", "reads", "writes", "cost", "tag", "srcc")

    def __init__(s, text, kind, reads=(), writes=(), cost=4, tag=None, srcc=()):
        s.text = text
        s.kind = kind
        s.reads = list(reads)
        s.writes = list(writes)
        s.cost = cost
        s.tag = tag
        s.srcc = list(srcc)


TRANS = ("v_exp_f32", "v_rcp_f32", "v_log_f32", "v_rsq_f32", "v_sqrt_f32")


def mk(op, dsts, srcs, kind=None, mods="", cost=None, tag=None):
    ops = [str(x) for x in dsts] + [str(x) for x in srcs]
    text = op + " " + ", ".join(ops) + ((" " + mods) if mods else "")
    reads = []
    for x in srcs:
        reads += _regs(x)
    writes = []
    for x in dsts:
        writes += _regs(x)
    base = op.replace("_e32", "").replace("_e64", "")
    if kind is None:
        if base in TRANS:
            kind = "trans"
        elif op.startswith("v_"):
            kind = "valu"
        elif op.startswith("s_"):
            kind = "salu"
        else:
            raise ValueError(op)
    if cost is None:
        cost = 8 if kind == "trans" else 4
    return Ins(text, kind, reads, writes, cost, tag)


def mfma(D, Aop, Bop, C):
    text = f"v_mfma_f32_32x32x16_bf16 {D}, {Aop}, {Bop}, {C}"
    reads = _regs(Aop) + _regs(Bop) + _regs(C)
    ins = Ins(text, "mfma", reads, _regs(D), cost=8)
    ins.srcc = _regs(C)
    return ins


def dsr128(D, addr, off, tag=None):
    assert 0 <= off < 65536
    return Ins(f"ds_read_b128 {D}, {addr} offset:{off}", "ds", _regs(addr), _regs(D), tag=tag)


def dsrtr(D, addr, off, tag=None):
    assert 0 <= off < 65536
    return Ins(f"ds_read_b64_tr_b16 {D}, {addr} offset:{off}", "ds", _regs(addr), _regs(D), tag=tag)


def dma(voff, srd, soff, off):
    assert 0 <= off < 4096
    o = f" offset:{off}" if off else ""
    return Ins(
        f"buffer_load_dwordx4 {voff}, {srd}, {soff} offen{o} lds",
        "dma",
        _regs(voff) + _regs(srd) + _regs(soff) + [("m0", 0)],
        [],
    )


def bload(D, voff, srd, soff, off):
    assert 0 <= off < 4096
    o = f" offset:{off}" if off else ""
    return Ins(
        f"buffer_load_dwordx4 {D}, {voff}, {srd}, {soff} offen{o}",
        "vmem",
        _regs(voff) + _regs(srd) + _regs(soff),
        _regs(D),
    )


def bstore(D, voff, srd, soff, off):
    assert 0 <= off < 4096
    o = f" offset:{off}" if off else ""
    ins = Ins(
        f"buffer_store_dwordx4 {D}, {voff}, {srd}, {soff} offen{o}",
        "vmemst",
        _regs(D) + _regs(voff) + _regs(srd) + _regs(soff),
        [],
    )
    ins.srcc = _regs(D)
    return ins


def wait(vm=None, lgkm=None):
    t = "s_waitcnt"
    if vm is not None:
        t += f" vmcnt({vm})"
    if lgkm is not None:
        t += f" lgkmcnt({lgkm})"
    return Ins(t, "wait")


def nop(n):
    assert 0 <= n <= 15
    return Ins(f"s_nop {n}", "nop", cost=4 * (n + 1))


def label(name):
    return Ins(name + ":", "label", cost=0)


def raw(text, kind="salu", reads=(), writes=()):
    return Ins(text, kind, reads, writes)


def ws_of(ins):
    if ins.kind == "label":
        return 0
    if ins.kind == "nop":
        return int(ins.text.split()[1]) + 1
    return 1


VALU_KINDS = ("valu", "trans")


def check_hazards(seq, verbose=True):
    probs = []
    n = len(seq)

    def dist(i, j):
        return sum(ws_of(seq[k]) for k in range(i + 1, j))

    WIN = 24
    for i, p in enumerate(seq):
        if p.kind in ("label", "wait", "nop"):
            continue
        pw = set(p.writes)
        psc = set(p.srcc)
        d = 0
        for j in range(i + 1, min(n, i + 1 + 64)):
            c = seq[j]
            if c.kind == "label":
                continue
            if d >= WIN:
                break
            cr = set(c.reads)
            cw = set(c.writes)
            need = 0
            why = ""
            if p.kind in VALU_KINDS and p.text.split()[0] not in ():
                if c.kind == "mfma" and (pw & cr):
                    need, why = 2, "VALU write -> MFMA read"
                if p.kind == "trans" and c.kind == "valu" and (pw & (cr | cw)):
                    need, why = max(need, 1), "trans -> VALU use"
                if c.text.startswith(("v_readfirstlane", "v_readlane")) and (pw & cr):
                    need, why = max(need, 1), "VALU -> readlane"
                if c.text.startswith("v_permlane") and (pw & (cr | cw)):
                    need, why = max(need, 2), "VALU -> permlane"
                sw = {r for r in pw if r[0] in ("s", "vcc")}
                if sw:
                    if c.kind in VALU_KINDS and (sw & cr):
                        need, why = max(need, 2), "VALU sgpr write -> VALU read"
                    if c.kind in ("vmem", "vmemst", "dma") and (sw & cr):
                        need, why = max(need, 5), "VALU sgpr write -> VMEM read"
            if p.kind == "mfma":
                if c.kind == "mfma":
                    if pw & set(c.srcc):
                        if set(c.srcc) == pw:
                            need = 0
                        else:
                            need, why = 10, "MFMA D -> MFMA srcC overlap"
                    ab = set(c.reads) - set(c.srcc)
                    if pw & ab:
                        need, why = max(need, 12), "MFMA D -> MFMA A/B"
                    if (pw & cw) and set(c.srcc) != pw and cw != pw:
                        need, why = max(need, 12), "MFMA D -> MFMA partial WAW"
                elif c.kind in ("valu", "trans", "ds", "vmem", "vmemst", "dma"):
                    if pw & (cr | cw):
                        need, why = 12, "MFMA D -> non-MFMA access"
                    if c.kind in VALU_KINDS and (psc & cw):
                        need, why = max(need, 7), "MFMA srcC read -> VALU write"
            if p.kind == "salu" and ("m0", 0) in pw and c.kind == "dma":
                need, why = max(need, 1), "m0 write -> LDS DMA"
            if p.kind == "vmemst" and c.kind in VALU_KINDS and (psc & cw):
                need, why = max(need, 2), "store data WAR"
            if need > d:
                probs.append((i, j, need, d, why, p.text, c.text))
            d += ws_of(c)
    if verbose:
        for pr in probs[:40]:
            print("HAZARD need %d have %d (%s):\n   %s\n   %s" % (pr[2], pr[3], pr[4], pr[5], pr[6]))
    return probs


def permswap(a, b):
    ins = Ins(f"v_permlane32_swap_b32 {a}, {b}", "valu", _regs(a) + _regs(b), _regs(a) + _regs(b))
    return ins
```

```python
import sys
sys.argv = [sys.argv[0]] + ["out=chk.s"] + sys.argv[1:]
import gen
from ir import *
g = gen.main()
seq = g.seq
lab = {ins.text[:-1]: i for i, ins in enumerate(seq) if ins.kind == "label"}
loop0 = lab["L_loop"]
loop_end = next(i for i, ins in enumerate(seq) if ins.text.startswith("s_cbranch_scc1 L_loop"))
end = lab["L_end"]
main = seq[:loop_end+1] + seq[loop0:loop_end+1] + seq[loop_end+1:end+2]
p = check_hazards(main)
print("main path hazards:", len(p))
tot = 0
for name in [k for k in lab if k.startswith("L_rare")]:
    st = lab[name]
    en = next(i for i in range(st, len(seq)) if seq[i].text.startswith("s_branch"))
    ret = seq[en].text.split()[1]
    br = next(i for i, ins in enumerate(seq) if ins.text.startswith("s_cbranch_vccnz " + name))
    tr = seq[br-60:br+1] + seq[st:en+1] + seq[lab[ret]:lab[ret]+80]
    p = check_hazards(tr)
    tot += len(p)
print("rare path hazards:", tot)
```

```python
import math
import sys

from ir import *

NAME = "standalone__gqa_softmax__prompt"

S_BASE = [0, 64]
P_BASE = [128, 160]
NEGM = 192
KADDR = 224
VADDR = 232
DMAK = 236
DMAV = 240
LSUM = 241
TSUM = 243
QOFF = 245
T = 246

OB = 0
QB = 128
KF = 192
VF = 224
NKS = 8
NVS = 8

SRD_Q, SRD_K, SRD_V, SRD_O = S(4, 4), S(8, 4), S(12, 4), S(16, 4)
sW = S(28)
sHEAD = S(29)
sQBLK = S(30)
sQROW = S(31)
sHB = S(32)
sKDMA = S(33)
sVDMA = S(34)
sKSOFT = S(35)
sM0K = 36
sM0V = 39
sLOOP = S(42)
sTHR = S(43)
sC = S(44)
sT0 = S(45)
sT1 = S(46)
sT2 = S(47)
sQROW1 = S(48)

LDS_V = 49152
LDS_Q = 98304
TILE = 16384


class Gen:
    def __init__(self, opts):
        self.o = opts
        self.seq = []

    def e(self, ins):
        self.seq.append(ins)
        return ins

    def valu(self, op, d, *srcs, mods=""):
        return self.e(mk(op, [d], list(srcs), mods=mods))

    def salu(self, op, d, *srcs):
        return self.e(mk(op, [d], list(srcs)))

    def stamp(self, k):
        if self.o.get("stamps"):
            b = 66 + 2 * k
            self.e(raw(f"s_memtime s[{b}:{b + 1}]", "smem", writes=S(b, 2).regs()))
            self.e(wait(lgkm=0))

    def pad(self, n):
        while n > 0:
            k = min(n, 16)
            self.e(nop(k - 1))
            n -= k

    def prologue(self):
        e = self.e
        e(raw("s_cmp_ge_u32 s2, 256"))
        e(raw("s_cbranch_scc1 L_end", "branch"))
        e(raw("s_load_dwordx8 s[20:27], s[0:1], 0", "smem", writes=S(20, 8).regs()))
        if self.o.get("stamps"):
            e(raw("s_load_dwordx2 s[62:63], s[0:1], 40", "smem", writes=S(62, 2).regs()))
            e(raw("s_memtime s[50:51]", "smem", writes=S(50, 2).regs()))
            e(raw("s_memrealtime s[58:59]", "smem", writes=S(58, 2).regs()))
        vLANE, vL31, vH, vX15, vB0, vRI, vLR, vP = [V(T + i) for i in range(8)]
        tmp = V(T + 8)
        tmp2 = V(T + 9)
        self.valu("v_and_b32", vLANE, 63, V(0))
        self.valu("v_lshrrev_b32", tmp, 6, V(0))
        self.valu("v_and_b32", vL31, 31, V(0))
        self.valu("v_readfirstlane_b32", sW, tmp)
        self.valu("v_lshrrev_b32", vH, 5, vLANE)
        self.valu("v_and_b32", vX15, 15, vL31)
        self.valu("v_lshlrev_b32", vB0, 8, vL31)
        for ks in range(8):
            self.valu("v_add_u32", tmp, 2 * ks, vH)
            self.valu("v_xor_b32", tmp, tmp, vX15)
            self.valu("v_lshl_add_u32", V(KADDR + ks), tmp, 4, vB0)
        self.valu("v_lshl_add_u32", V(QOFF), vH, 4, vB0)
        self.valu("v_and_b32", tmp, 15, vLANE)
        self.valu("v_lshrrev_b32", vRI, 2, tmp)
        self.valu("v_lshlrev_b32", tmp, 2, vH)
        self.valu("v_add_u32", tmp, tmp, vRI)
        self.valu("v_lshlrev_b32", tmp, 8, tmp)
        self.valu("v_lshrrev_b32", tmp2, 4, vLANE)
        self.valu("v_and_b32", tmp2, 1, tmp2)
        self.valu("v_lshl_add_u32", tmp, tmp2, 5, tmp)
        self.valu("v_and_b32", tmp2, 3, vLANE)
        self.valu("v_lshl_add_u32", tmp, tmp2, 3, tmp)
        self.valu("v_add_u32", tmp, LDS_V, tmp)
        for db in range(4):
            self.valu("v_xor_b32", tmp2, db, vRI)
            self.valu("v_lshl_add_u32", V(VADDR + db), tmp2, 6, tmp)
        self.valu("v_lshrrev_b32", vLR, 4, vLANE)
        self.valu("v_and_b32", vP, 15, vLANE)
        self.valu("v_lshlrev_b32", tmp, 8, vLR)
        self.valu("v_lshrrev_b32", tmp2, 6, V(0))
        self.valu("v_lshl_add_u32", tmp, tmp2, 12, tmp)
        for t in range(4):
            self.valu("v_add_u32", tmp2, 4 * t, vLR)
            self.valu("v_xor_b32", tmp2, tmp2, vP)
            self.valu("v_lshl_add_u32", V(DMAK + t), tmp2, 4, tmp)
        self.valu("v_lshlrev_b32", tmp2, 2, vLR)
        self.valu("v_xor_b32", tmp2, tmp2, vP)
        self.valu("v_lshl_add_u32", V(DMAV), tmp2, 4, tmp)
        e(raw("s_and_b32 s29, s2, 7", writes=[("s", 29)]))
        e(raw("s_lshl_b32 s29, s29, 2", writes=[("s", 29)]))
        e(raw("s_lshr_b32 s30, s2, 6", writes=[("s", 30)]))
        e(raw("s_add_u32 s29, s29, s30", writes=[("s", 29)]))
        e(raw("s_lshr_b32 s30, s2, 3", writes=[("s", 30)]))
        e(raw("s_and_b32 s30, s30, 7", writes=[("s", 30)]))
        e(raw("s_lshl_b32 s32, s29, 19", writes=[("s", 32)]))
        e(raw("s_lshl_b32 s31, s30, 16", writes=[("s", 31)]))
        e(raw("s_add_u32 s31, s31, s32", writes=[("s", 31)]))
        e(raw("s_lshl_b32 s45, s28, 14", writes=[("s", 45)]))
        e(raw("s_add_u32 s31, s31, s45", writes=[("s", 31)]))
        e(raw("s_add_u32 s48, s31, 8192", writes=[("s", 48)]))
        e(raw("s_lshl_b32 s45, s28, 12", writes=[("s", 45)]))
        for sl in range(3):
            e(raw(f"s_add_u32 s{sM0K + sl}, s45, {sl * TILE}", writes=[("s", sM0K + sl)]))
            e(raw(f"s_add_u32 s{sM0V + sl}, s45, {LDS_V + sl * TILE}", writes=[("s", sM0V + sl)]))
        e(raw("s_mov_b32 s43, 0x44800000", writes=[("s", 43)]))
        cbits = float_bits(math.log2(math.e) / math.sqrt(128.0))
        e(raw(f"s_mov_b32 s44, 0x{cbits:08x}", writes=[("s", 44)]))
        e(wait(lgkm=0))
        for srd, p in ((4, 20), (8, 22), (12, 24), (16, 26)):
            e(raw(f"s_mov_b32 s{srd}, s{p}", writes=[("s", srd)]))
            e(raw(f"s_mov_b32 s{srd + 1}, s{p + 1}", writes=[("s", srd + 1)]))
            e(raw(f"s_mov_b32 s{srd + 2}, 0x1000000", writes=[("s", srd + 2)]))
            e(raw(f"s_mov_b32 s{srd + 3}, 0x00020000", writes=[("s", srd + 3)]))
        e(raw("s_mov_b32 s33, s32", writes=[("s", 33)]))
        e(raw("s_mov_b32 s34, s32", writes=[("s", 34)]))
        e(raw(f"s_mov_b32 m0, s{sM0K + 0}", writes=[("m0", 0)]))
        e(nop(0))
        for t in range(4):
            e(dma(V(DMAK + t), SRD_K, sKDMA, 1024 * t))
        e(raw("s_add_u32 s33, s33, %d" % TILE, writes=[("s", 33)]))
        qv = [V(72 + i) for i in range(4)]
        self.valu("v_lshrrev_b32", tmp2, 6, V(0))
        self.valu("v_lshlrev_b32", tmp2, 12, tmp2)
        for t in range(4):
            self.valu("v_sub_u32", qv[t], V(DMAK + t), tmp2)
        e(raw("s_lshl_b32 s45, s28, 14", writes=[("s", 45)]))
        e(raw("s_add_u32 s45, s45, %d" % LDS_Q, writes=[("s", 45)]))
        for pg in range(4):
            e(raw("s_add_u32 s46, s45, %d" % (pg * 4096), writes=[("s", 46)]))
            e(raw("s_mov_b32 m0, s46", writes=[("m0", 0)]))
            e(raw("s_add_u32 s47, s31, %d" % (pg * 4096), writes=[("s", 47)]))
            for t in range(4):
                e(dma(qv[t], SRD_Q, sT2, 1024 * t))
        for ks in range(8):
            self.valu("v_add_u32", V(64 + ks), S(45), V(KADDR + ks))
        for kt, vt in ((1, 0), (2, 1)):
            e(raw(f"s_mov_b32 m0, s{sM0K + kt % 3}", writes=[("m0", 0)]))
            e(nop(0))
            for t in range(4):
                e(dma(V(DMAK + t), SRD_K, sKDMA, 1024 * t))
            e(raw(f"s_mov_b32 m0, s{sM0V + vt % 3}", writes=[("m0", 0)]))
            e(nop(0))
            for t in range(4):
                e(dma(V(DMAV), SRD_V, sVDMA, 1024 * t))
            e(raw("s_add_u32 s33, s33, %d" % TILE, writes=[("s", 33)]))
            e(raw("s_add_u32 s34, s34, %d" % TILE, writes=[("s", 34)]))
        for i in range(128):
            e(mk("v_accvgpr_write_b32", [A(OB + i)], [0]))
        self.valu("v_mov_b32", V(LSUM), 0)
        self.valu("v_mov_b32", V(LSUM + 1), 0)
        e(raw("s_mov_b32 s35, s32", writes=[("s", 35)]))
        ts = [V(T + i) for i in range(9)]
        k = 0
        self.stamp(0)
        e(wait(vm=16))
        self.stamp(1)
        for f in range(16):
            qh, ks = f >> 3, f & 7
            e(dsr128(V(4 * f, 4), V(64 + ks), qh * 8192))
        for f in range(16):
            e(wait(lgkm=15 - f))
            for d in range(4):
                src = V(4 * f + d)
                t0, t1, t2 = ts[k], ts[k + 1], ts[k + 2]
                k = (k + 3) % 9
                self.valu("v_lshlrev_b32", t0, 16, src)
                self.valu("v_and_b32", t1, "0xffff0000", src)
                self.valu("v_mul_f32", t0, sC, t0)
                self.valu("v_mul_f32", t1, sC, t1)
                self.valu("v_cvt_pk_bf16_f32", t2, t0, t1)
                e(mk("v_accvgpr_write_b32", [A(QB + 4 * f + d)], [t2]))
        self.stamp(2)
        e(raw("s_barrier", "barrier"))
        self.stamp(3)
        self.lq = []
        self.k_prefetch(0)
        self.iteration(4, "qk0")
        self.stamp(4)
        e(wait(vm=12))
        e(raw("s_barrier", "barrier"))
        self.stamp(5)
        e(raw(f"s_mov_b32 m0, s{sM0K + 0}", writes=[("m0", 0)]))
        e(nop(0))
        for t in range(4):
            e(dma(V(DMAK + t), SRD_K, sKDMA, 1024 * t))
        e(raw("s_add_u32 s33, s33, %d" % TILE, writes=[("s", 33)]))
        self.k_prefetch(1)
        self.pad(8)
        self.init_max(S_BASE[0])
        self.stamp(6)
        self.iteration(5, "qksm")
        self.lsum_update()

    def init_max(self, sb):
        dl = [V(T + 0), V(T + 1)]
        tA, tB = V(T + 2), V(T + 3)
        for qh in range(2):
            regs = [V(sb + (kh * 2 + qh) * 16 + r) for kh in range(2) for r in range(16)]
            m = dl[qh]
            self.valu("v_max3_f32", m, regs[0], regs[1], regs[2])
            i = 3
            while i + 1 < 32:
                self.valu("v_max3_f32", m, m, regs[i], regs[i + 1])
                i += 2
            self.valu("v_max_f32", m, m, regs[31])
            self.valu("v_mov_b32", tA, m)
            self.valu("v_mov_b32", tB, m)
            self.pad(2)
            self.e(permswap(tA, tB))
            self.pad(2)
            self.valu("v_max_f32", m, tA, tB)
        for qh in range(2):
            for r in range(16):
                self.valu("v_sub_f32", V(NEGM + 16 * qh + r), 0, dl[qh])
        for kh in range(2):
            for qh in range(2):
                for r in range(16):
                    x = V(sb + (kh * 2 + qh) * 16 + r)
                    self.valu("v_sub_f32", x, x, dl[qh])

    def k_prefetch(self, slot):
        for f in range(4):
            self.e(dsr128(A(KF + 4 * (f % NKS), 4), V(KADDR + f), slot * TILE, tag=("K", f)))
            self.lq.append(("K", f))

    def slow_k_loads(self, soff):
        self.e(raw(f"s_add_u32 s46, {soff}, 8192", writes=[("s", 46)]))
        for f in range(16):
            kh, ks = f >> 3, f & 7
            self.e(bload(A(KF + 4 * f, 4), V(QOFF), SRD_K, soff if kh == 0 else sT1, 32 * ks))

    def slow_qk_mfma(self, sb, first):
        for f in range(16):
            kh, ks = f >> 3, f & 7
            for qh in range(2):
                D = V(sb + (kh * 2 + qh) * 16, 16)
                if ks == 0:
                    C = 0 if first else V(NEGM + 16 * qh, 16)
                else:
                    C = D
                self.e(mfma(D, A(KF + 4 * f, 4), A(QB + (qh * 8 + ks) * 4, 4), C))

    def slow_softmax(self, sb, pb, first, fix):
        dl = [V(T + 0), V(T + 1)]
        tA, tB = V(T + 2), V(T + 3)
        fq = [V(T + 4), V(T + 5)]
        for qh in range(2):
            regs = [V(sb + (kh * 2 + qh) * 16 + r) for kh in range(2) for r in range(16)]
            m = dl[qh]
            self.valu("v_max3_f32", m, regs[0], regs[1], regs[2])
            i = 3
            while i + 1 < 32:
                self.valu("v_max3_f32", m, m, regs[i], regs[i + 1])
                i += 2
            self.valu("v_max_f32", m, m, regs[31])
            self.valu("v_mov_b32", tA, m)
            self.valu("v_mov_b32", tB, m)
            self.pad(2)
            self.e(permswap(tA, tB))
            self.pad(2)
            self.valu("v_max_f32", m, tA, tB)
            if not first:
                self.valu("v_max_f32", m, 0, m)
        if not first:
            for qh in range(2):
                self.e(mk("v_exp_f32_e64", [fq[qh]], [Neg(dl[qh])]))
            self.pad(2)
            for qh in range(2):
                self.valu("v_mul_f32", V(LSUM + qh), V(LSUM + qh), fq[qh])
            tt = [V(T + 6), V(T + 7), V(T + 8), V(T + 9)]
            k = 0
            for db in range(4):
                for qh in range(2):
                    for r in range(16):
                        ar = A(OB + (db * 2 + qh) * 16 + r)
                        t = tt[k]
                        k = (k + 1) % 4
                        self.e(mk("v_accvgpr_read_b32", [t], [ar]))
                        self.pad(1)
                        self.valu("v_mul_f32", t, t, fq[qh])
                        self.pad(1)
                        self.e(mk("v_accvgpr_write_b32", [ar], [t]))
        for qh in range(2):
            for r in range(16):
                self.valu("v_sub_f32", V(NEGM + 16 * qh + r), V(NEGM + 16 * qh + r), dl[qh])
        for kh in range(2):
            for qh in range(2):
                for r in range(16):
                    x = V(sb + (kh * 2 + qh) * 16 + r)
                    self.valu("v_sub_f32", x, x, dl[qh])
        for kh in range(2):
            for qh in range(2):
                for r in range(16):
                    x = V(sb + (kh * 2 + qh) * 16 + r)
                    self.e(mk("v_exp_f32", [x], [x]))
        self.pad(1)
        for qh in range(2):
            regs = [V(sb + (kh * 2 + qh) * 16 + r) for kh in range(2) for r in range(16)]
            self.valu("v_add_f32", V(TSUM + qh), regs[0], regs[1])
            for x in regs[2:]:
                self.valu("v_add_f32", V(TSUM + qh), V(TSUM + qh), x)
        for kh in range(2):
            for qh in range(2):
                for r in range(0, 16, 2):
                    t = 2 * kh + (r >> 3)
                    d = V(pb + (t * 2 + qh) * 4 + ((r & 7) >> 1))
                    x0 = V(sb + (kh * 2 + qh) * 16 + r)
                    x1 = V(sb + (kh * 2 + qh) * 16 + r + 1)
                    self.valu("v_cvt_pk_bf16_f32", d, x0, x1)
        if fix is not None:
            for kh in range(2):
                for qh in range(2):
                    for r in range(16):
                        x = V(fix + (kh * 2 + qh) * 16 + r)
                        self.valu("v_sub_f32", x, x, dl[qh])

    def softmax_fifo(self, Ss, Pw):
        ops = []
        nel = 64

        def reg(e):
            kh, r, qh = e >> 5, (e >> 1) & 15, e & 1
            return V(Ss + (kh * 2 + qh) * 16 + r)

        cnt = [0, 0]

        def add_op(e):
            qh = e & 1
            if cnt[qh] == 0:
                cnt[qh] = 1
                return
            if cnt[qh] == 1:
                first = reg(e - 2)
                ops.append(mk("v_add_f32", [V(TSUM + qh)], [first, reg(e)]))
            else:
                ops.append(mk("v_add_f32", [V(TSUM + qh)], [V(TSUM + qh), reg(e)]))
            cnt[qh] += 1
            kh, r = e >> 5, (e >> 1) & 15
            if r & 1:
                t = 2 * kh + (r >> 3)
                d = V(Pw + (t * 2 + qh) * 4 + ((r & 7) >> 1))
                ops.append(mk("v_cvt_pk_bf16_f32", [d], [reg(e - 2), reg(e)]))

        for e in range(nel):
            ops.append(mk("v_exp_f32", [reg(e)], [reg(e)]))
            if e >= 1:
                add_op(e - 1)
        add_op(nel - 1)
        return ops

    def iteration(self, im6, kind):
        o = self.o
        par = im6 & 1
        Sq = S_BASE[par]
        Ss = S_BASE[par ^ 1]
        Pw = P_BASE[par ^ 1]
        Pr = P_BASE[par]
        sK = (im6 + 2) % 3
        sV = im6 % 3
        sKn = (im6 + 3) % 3
        dK = (im6 + 1) % 3
        dV = (im6 + 2) % 3
        do_qk = kind in ("full", "qk0", "qksm")
        do_sm = kind in ("full", "noqk", "qksm")
        do_pv = kind in ("full", "noqk", "last")
        mf = []
        if do_qk:
            for n in range(32):
                kh, ks, qh, f = n >> 4, (n >> 1) & 7, n & 1, n >> 1
                D = V(Sq + (kh * 2 + qh) * 16, 16)
                C = (0 if kind == "qk0" else V(NEGM + 16 * qh, 16)) if ks == 0 else D
                need = [("K", f), ("K", f + 1)] if n % 4 == 0 else []
                mf.append((mfma(D, A(KF + 4 * (f % NKS), 4), A(QB + (qh * 8 + ks) * 4, 4), C), need))
        pvb = len(mf)
        for j in range(32 if do_pv else 0):
            g, qh = j >> 1, j & 1
            t, db = g >> 2, g & 3
            D = A(OB + (db * 2 + qh) * 16, 16)
            need = [("V", g), ("V", g + 1)] if j % 4 == 0 else []
            mf.append((mfma(D, A(VF + 4 * (g % NVS), 4), V(Pr + (t * 2 + qh) * 4, 4), D), need))
        nm = len(mf)
        fixed = {}

        def put(gap, ins):
            fixed.setdefault(max(gap, -1), []).append(ins)

        if do_qk:
            for f in range(4, 16):
                kh, ks = f >> 3, f & 7
                put(2 * f - o["k_la"], dsr128(A(KF + 4 * (f % NKS), 4), V(KADDR + ks), sK * TILE + kh * 8192, tag=("K", f)))
        for g in range(16 if do_pv else 0):
            t, db = g >> 2, g & 3
            base = pvb + 2 * g - o["v_la"]
            put(base, dsrtr(A(VF + 4 * (g % NVS), 2), V(VADDR + db), sV * TILE + t * 4096, tag=("V", g)))
            put(base + 1, dsrtr(A(VF + 4 * (g % NVS) + 2, 2), V(VADDR + db), sV * TILE + t * 4096 + 2048, tag=("V", g)))
        bar_gap = nm - 8 if kind not in ("last", "qk0") else None
        if kind == "full":
            put(1, raw(f"s_mov_b32 m0, s{sM0K + dK}", writes=[("m0", 0)]))
            for t in range(4):
                put(2 + 2 * t, dma(V(DMAK + t), SRD_K, sKDMA, 1024 * t))
            put(9, raw(f"s_mov_b32 m0, s{sM0V + dV}", writes=[("m0", 0)]))
            for t in range(4):
                put(10 + 2 * t, dma(V(DMAV), SRD_V, sVDMA, 1024 * t))
            put(18, raw("s_add_u32 s33, s33, %d" % TILE, writes=[("s", 33)]))
            put(19, raw("s_add_u32 s34, s34, %d" % TILE, writes=[("s", 34)]))
        fifo = self.softmax_fifo(Ss, Pw) if do_sm else []
        check_done = (not do_sm) or kind == "qksm"

        for ins in fixed.get(-1, []):
            self.emit_ds(ins)
        for n, (m, need) in enumerate(mf):
            self.need(need)
            self.e(m)
            budget = o["budget"]
            nxt_need = mf[n + 1][1] if n + 1 < nm else []
            if any(t in self.lq for t in nxt_need):
                budget -= 4
            for ins in fixed.get(n, []):
                if ins.kind == "ds":
                    self.emit_ds(ins)
                else:
                    self.e(ins)
                budget -= ins.cost
            if n == bar_gap:
                self.e(wait(vm={"full": 8, "qksm": 4}.get(kind, 0), lgkm=0))
                self.lq = []
                self.e(raw("s_barrier", "barrier"))
                budget -= 8
                if kind == "full":
                    pass
            if kind in ("full", "qksm") and bar_gap is not None and bar_gap < n <= bar_gap + 4:
                f = n - bar_gap - 1
                self.e(dsr128(A(KF + 4 * (f % NKS), 4), V(KADDR + f), sKn * TILE, tag=("K", f)))
                self.lq.append(("Kn", f))
                budget -= 4
            while fifo and fifo[0].cost <= budget:
                ins = fifo.pop(0)
                self.e(ins)
                budget -= ins.cost
            if not fifo and not check_done and budget >= 8:
                self.valu("v_max_f32", V(T), V(TSUM), V(TSUM + 1))
                self.valu("v_cmp_lt_f32", "vcc", sTHR, V(T))
                check_done = True
        if kind == "full":
            assert not fifo, "softmax ops did not fit: %d left" % len(fifo)
        while fifo:
            self.e(fifo.pop(0))
        if not check_done:
            self.valu("v_max_f32", V(T), V(TSUM), V(TSUM + 1))
            self.valu("v_cmp_lt_f32", "vcc", sTHR, V(T))
        self.lq = [("K", t[1]) if t[0] == "Kn" else t for t in self.lq]

    def emit_ds(self, ins):
        self.e(ins)
        self.lq.append(ins.tag)

    def need(self, tags):
        idx = -1
        for t in tags:
            for k in range(len(self.lq) - 1, -1, -1):
                if self.lq[k] == t:
                    idx = max(idx, k)
                    break
        if idx >= 0:
            n = len(self.lq) - 1 - idx
            assert n <= 15
            self.e(wait(lgkm=n))
            self.lq = self.lq[idx + 1:]

    def rare(self, name, ret, im6, kind):
        par = im6 & 1
        Ss = S_BASE[par ^ 1]
        Pw = P_BASE[par ^ 1]
        Sq = S_BASE[par] if kind == "full" else None
        sKn = (im6 + 3) % 3
        self.e(label(name))
        self.pad(20)
        self.e(wait(vm=0, lgkm=0))
        self.slow_k_loads(sKSOFT)
        self.e(wait(vm=0))
        self.pad(2)
        self.slow_qk_mfma(Ss, first=False)
        self.pad(20)
        self.slow_softmax(Ss, Pw, first=False, fix=Sq)
        self.valu("v_add_f32", V(LSUM), V(LSUM), V(TSUM))
        self.valu("v_add_f32", V(LSUM + 1), V(LSUM + 1), V(TSUM + 1))
        self.pad(8)
        if kind == "full":
            save = self.lq
            self.lq = []
            self.k_prefetch(sKn)
            self.lq = save
        self.e(raw(f"s_branch {ret}", "branch"))

    def epilogue(self):
        e = self.e
        self.pad(20)
        inv = [V(T + 0), V(T + 1)]
        tA, tB = V(T + 2), V(T + 3)
        for qh in range(2):
            self.valu("v_mov_b32", tA, V(LSUM + qh))
            self.valu("v_mov_b32", tB, V(LSUM + qh))
            self.pad(2)
            e(permswap(tA, tB))
            self.pad(2)
            self.valu("v_add_f32", tA, tA, tB)
            self.e(mk("v_rcp_f32", [inv[qh]], [tA]))
        self.pad(2)
        k = 0
        for qh in range(2):
            so = sQROW if qh == 0 else sQROW1
            for db in range(4):
                for gp in range(2):
                    base = (k % 4) * 16
                    k += 1
                    tr = [V(base + i) for i in range(8)]
                    outr = V(base + 8, 4)
                    for i in range(8):
                        e(mk("v_accvgpr_read_b32", [tr[i]], [A(OB + (db * 2 + qh) * 16 + 8 * gp + i)]))
                    self.pad(1)
                    for i in range(8):
                        self.valu("v_mul_f32", tr[i], tr[i], inv[qh])
                    for i in range(4):
                        self.valu("v_cvt_pk_bf16_f32", outr.sub(i), tr[2 * i], tr[2 * i + 1])
                    self.pad(2)
                    e(permswap(outr.sub(0), outr.sub(2)))
                    e(permswap(outr.sub(1), outr.sub(3)))
                    self.pad(1)
                    e(bstore(outr, V(QOFF), SRD_O, so, 64 * db + 32 * gp))

    def build(self):
        self.prologue()
        e = self.e
        e(raw("s_mov_b32 s42, 0", writes=[("s", 42)]))
        if self.o.get("stamps"):
            e(raw("s_memtime s[52:53]", "smem", writes=S(52, 2).regs()))
            e(wait(lgkm=0))
        e(label("L_loop"))
        loop_lq = list(self.lq)
        rares = []
        for im6 in range(6):
            self.iteration(im6, "full")
            e(raw(f"s_cbranch_vccnz L_rare{im6}", "branch", reads=[("vcc", 0)]))
            e(label(f"L_ret{im6}"))
            rares.append((f"L_rare{im6}", f"L_ret{im6}", im6, "full", list(self.lq)))
            self.lsum_update()
        assert self.lq == loop_lq, (self.lq, loop_lq)
        e(raw("s_add_u32 s42, s42, 1", writes=[("s", 42)]))
        e(raw("s_cmp_lt_u32 s42, 5"))
        e(raw("s_cbranch_scc1 L_loop", "branch"))
        if self.o.get("stamps"):
            e(raw("s_memtime s[54:55]", "smem", writes=S(54, 2).regs()))
            e(wait(lgkm=0))
            self.lq = []
        self.iteration(0, "noqk")
        e(raw("s_cbranch_vccnz L_rareT", "branch", reads=[("vcc", 0)]))
        e(label("L_retT"))
        rares.append(("L_rareT", "L_retT", 0, "noqk", list(self.lq)))
        self.lsum_update()
        self.iteration(1, "last")
        self.epilogue()
        if self.o.get("stamps"):
            e(wait(vm=0))
            e(raw("s_memtime s[56:57]", "smem", writes=S(56, 2).regs()))
            e(raw("s_memrealtime s[60:61]", "smem", writes=S(60, 2).regs()))
            e(wait(lgkm=0))
            e(raw("s_lshl_b32 s64, s2, 2", writes=[("s", 64)]))
            e(raw("s_add_u32 s64, s64, s28", writes=[("s", 64)]))
            e(raw("s_lshl_b32 s64, s64, 6", writes=[("s", 64)]))
            self.valu("v_mov_b32", V(250), S(64))
            for i, sr in enumerate((50, 51, 52, 53, 54, 55, 56, 57, 58, 59, 60, 61)):
                self.valu("v_mov_b32", V(i), S(sr))
            e(raw("s_mov_b64 exec, 1"))
            e(raw("global_store_dwordx4 v250, v[0:3], s[62:63]", "vmemst"))
            e(raw("global_store_dwordx4 v250, v[4:7], s[62:63] offset:16", "vmemst"))
            e(raw("global_store_dwordx4 v250, v[8:11], s[62:63] offset:32", "vmemst"))
            e(wait(vm=0))
            e(raw("s_lshl_b32 s64, s2, 2", writes=[("s", 64)]))
            e(raw("s_add_u32 s64, s64, s28", writes=[("s", 64)]))
            e(raw("s_lshl_b32 s64, s64, 7", writes=[("s", 64)]))
            e(raw("s_add_u32 s64, s64, 0x100000", writes=[("s", 64)]))
            self.valu("v_mov_b32", V(250), S(64))
            for i in range(16):
                self.valu("v_mov_b32", V(i), S(66 + i))
            for i in range(4):
                e(raw(f"global_store_dwordx4 v250, v[{4 * i}:{4 * i + 3}], s[62:63] offset:{16 * i}", "vmemst"))
            e(wait(vm=0))
        e(label("L_end"))
        e(raw("s_endpgm", "branch"))
        main_lq = self.lq
        for name, ret, im6, kind, lq in rares:
            self.lq = lq
            self.rare(name, ret, im6, kind)
        self.lq = main_lq

    def lsum_update(self):
        self.valu("v_add_f32", V(LSUM), V(LSUM), V(TSUM))
        self.valu("v_add_f32", V(LSUM + 1), V(LSUM + 1), V(TSUM + 1))
        self.e(raw("s_add_u32 s35, s35, %d" % TILE, writes=[("s", 35)]))

    def text(self):
        out = []
        for ins in self.seq:
            if ins.kind == "label":
                out.append(ins.text)
            else:
                out.append("    " + ins.text)
        return "\n".join(out)


def float_bits(x):
    import struct

    return struct.unpack("<I", struct.pack("<f", x))[0]


HEADER = """; Kernarg layout for this problem (48 bytes, ptrs only, base s[0:1]):
;   offset  24: d_out     shape=(1, 32, 2048, 128) dtype=bfloat16 (2 bytes/elem)
; grid=ceil(out_elems/256), lds=0). Harness parses it; keep it on one line.
; @launch grid=(256,1,1) block=(256,1,1) lds=163840
.amdgcn_target "amdgcn-amd-amdhsa--gfx950"
.text
.globl standalone__gqa_softmax__prompt_kernel
.p2align 8
.type standalone__gqa_softmax__prompt_kernel,@function
standalone__gqa_softmax__prompt_kernel:
"""

FOOTER = """
.section .rodata,"a"
.p2align 6
.amdhsa_kernel standalone__gqa_softmax__prompt_kernel
  .amdhsa_next_free_vgpr 512
  .amdhsa_next_free_sgpr 96
  .amdhsa_accum_offset 256
  .amdhsa_group_segment_fixed_size 0
  .amdhsa_kernarg_size 48
  .amdhsa_user_sgpr_count 2
  .amdhsa_user_sgpr_kernarg_segment_ptr 1
  .amdhsa_system_sgpr_workgroup_id_x 1
.end_amdhsa_kernel
"""


def main():
    opts = dict(k_la=7, v_la=11, budget=24)
    out = "cdna_kernels/%s.s" % NAME
    for a in sys.argv[1:]:
        if "=" in a:
            k, v = a.split("=")
            if k == "out":
                out = v
            else:
                opts[k] = int(v)
    g = Gen(opts)
    g.build()
    body = g.text()
    open(out, "w").write(HEADER + body + "\n" + FOOTER)
    n = sum(1 for i in g.seq if i.kind != "label")
    print("instructions:", n, "->", out)
    return g


if __name__ == "__main__":
    main()
```

```python
import math
import sys

from ir import *

NAME = "standalone__gqa_softmax__prompt"

S_BASE = [0, 64]
P_BASE = [128, 160]
NEGM = 192
KADDR = 224
VADDR = 232
DMAK = 236
DMAV = 240
LSUM = 241
TSUM = 243
QOFF = 245
T = 246

OB = 0
QB = 128
KF = 192
VF = 224
NKS = 8
NVS = 8

SRD_Q, SRD_K, SRD_V, SRD_O = S(4, 4), S(8, 4), S(12, 4), S(16, 4)
sW = S(28)
sHEAD = S(29)
sQBLK = S(30)
sQROW = S(31)
sHB = S(32)
sKDMA = S(33)
sVDMA = S(34)
sKSOFT = S(35)
sM0K = 36
sM0V = 39
sLOOP = S(42)
sTHR = S(43)
sC = S(44)
sT0 = S(45)
sT1 = S(46)
sT2 = S(47)
sQROW1 = S(48)

LDS_V = 49152
LDS_Q = 98304
TILE = 16384


class Gen:
    def __init__(self, opts):
        self.o = opts
        self.seq = []

    def e(self, ins):
        self.seq.append(ins)
        return ins

    def valu(self, op, d, *srcs, mods=""):
        return self.e(mk(op, [d], list(srcs), mods=mods))

    def salu(self, op, d, *srcs):
        return self.e(mk(op, [d], list(srcs)))

    def stamp(self, k):
        if self.o.get("stamps"):
            b = 66 + 2 * k
            self.e(raw(f"s_memtime s[{b}:{b + 1}]", "smem", writes=S(b, 2).regs()))
            self.e(wait(lgkm=0))

    def pad(self, n):
        while n > 0:
            k = min(n, 16)
            self.e(nop(k - 1))
            n -= k

    def prologue(self):
        e = self.e
        e(raw("s_cmp_ge_u32 s2, 256"))
        e(raw("s_cbranch_scc1 L_end", "branch"))
        e(raw("s_load_dwordx8 s[20:27], s[0:1], 0", "smem", writes=S(20, 8).regs()))
        if self.o.get("stamps"):
            e(raw("s_load_dwordx2 s[62:63], s[0:1], 40", "smem", writes=S(62, 2).regs()))
            e(raw("s_memtime s[50:51]", "smem", writes=S(50, 2).regs()))
            e(raw("s_memrealtime s[58:59]", "smem", writes=S(58, 2).regs()))
        vLANE, vL31, vH, vX15, vB0, vRI, vLR, vP = [V(T + i) for i in range(8)]
        tmp = V(T + 8)
        tmp2 = V(T + 9)
        self.valu("v_and_b32", vLANE, 63, V(0))
        self.valu("v_lshrrev_b32", tmp, 6, V(0))
        self.valu("v_and_b32", vL31, 31, V(0))
        self.valu("v_readfirstlane_b32", sW, tmp)
        self.valu("v_lshrrev_b32", vH, 5, vLANE)
        self.valu("v_and_b32", vX15, 15, vL31)
        self.valu("v_lshlrev_b32", vB0, 8, vL31)
        for ks in range(8):
            self.valu("v_add_u32", tmp, 2 * ks, vH)
            self.valu("v_xor_b32", tmp, tmp, vX15)
            self.valu("v_lshl_add_u32", V(KADDR + ks), tmp, 4, vB0)
        self.valu("v_lshl_add_u32", V(QOFF), vH, 4, vB0)
        self.valu("v_and_b32", tmp, 15, vLANE)
        self.valu("v_lshrrev_b32", vRI, 2, tmp)
        self.valu("v_lshlrev_b32", tmp, 2, vH)
        self.valu("v_add_u32", tmp, tmp, vRI)
        self.valu("v_lshlrev_b32", tmp, 8, tmp)
        self.valu("v_lshrrev_b32", tmp2, 4, vLANE)
        self.valu("v_and_b32", tmp2, 1, tmp2)
        self.valu("v_lshl_add_u32", tmp, tmp2, 5, tmp)
        self.valu("v_and_b32", tmp2, 3, vLANE)
        self.valu("v_lshl_add_u32", tmp, tmp2, 3, tmp)
        self.valu("v_add_u32", tmp, LDS_V, tmp)
        for db in range(4):
            self.valu("v_xor_b32", tmp2, db, vRI)
            self.valu("v_lshl_add_u32", V(VADDR + db), tmp2, 6, tmp)
        self.valu("v_lshrrev_b32", vLR, 4, vLANE)
        self.valu("v_and_b32", vP, 15, vLANE)
        self.valu("v_lshlrev_b32", tmp, 8, vLR)
        self.valu("v_lshrrev_b32", tmp2, 6, V(0))
        self.valu("v_lshl_add_u32", tmp, tmp2, 12, tmp)
        for t in range(4):
            self.valu("v_add_u32", tmp2, 4 * t, vLR)
            self.valu("v_xor_b32", tmp2, tmp2, vP)
            self.valu("v_lshl_add_u32", V(DMAK + t), tmp2, 4, tmp)
        self.valu("v_lshlrev_b32", tmp2, 2, vLR)
        self.valu("v_xor_b32", tmp2, tmp2, vP)
        self.valu("v_lshl_add_u32", V(DMAV), tmp2, 4, tmp)
        e(raw("s_and_b32 s29, s2, 7", writes=[("s", 29)]))
        e(raw("s_lshl_b32 s29, s29, 2", writes=[("s", 29)]))
        e(raw("s_lshr_b32 s30, s2, 6", writes=[("s", 30)]))
        e(raw("s_add_u32 s29, s29, s30", writes=[("s", 29)]))
        e(raw("s_lshr_b32 s30, s2, 3", writes=[("s", 30)]))
        e(raw("s_and_b32 s30, s30, 7", writes=[("s", 30)]))
        e(raw("s_lshl_b32 s32, s29, 19", writes=[("s", 32)]))
        e(raw("s_lshl_b32 s31, s30, 16", writes=[("s", 31)]))
        e(raw("s_add_u32 s31, s31, s32", writes=[("s", 31)]))
        e(raw("s_lshl_b32 s45, s28, 14", writes=[("s", 45)]))
        e(raw("s_add_u32 s31, s31, s45", writes=[("s", 31)]))
        e(raw("s_add_u32 s48, s31, 8192", writes=[("s", 48)]))
        e(raw("s_lshl_b32 s45, s28, 12", writes=[("s", 45)]))
        for sl in range(3):
            e(raw(f"s_add_u32 s{sM0K + sl}, s45, {sl * TILE}", writes=[("s", sM0K + sl)]))
            e(raw(f"s_add_u32 s{sM0V + sl}, s45, {LDS_V + sl * TILE}", writes=[("s", sM0V + sl)]))
        e(raw("s_mov_b32 s43, 0x44800000", writes=[("s", 43)]))
        cbits = float_bits(math.log2(math.e) / math.sqrt(128.0))
        e(raw(f"s_mov_b32 s44, 0x{cbits:08x}", writes=[("s", 44)]))
        e(wait(lgkm=0))
        for srd, p in ((4, 20), (8, 22), (12, 24), (16, 26)):
            e(raw(f"s_mov_b32 s{srd}, s{p}", writes=[("s", srd)]))
            e(raw(f"s_mov_b32 s{srd + 1}, s{p + 1}", writes=[("s", srd + 1)]))
            e(raw(f"s_mov_b32 s{srd + 2}, 0x1000000", writes=[("s", srd + 2)]))
            e(raw(f"s_mov_b32 s{srd + 3}, 0x00020000", writes=[("s", srd + 3)]))
        e(raw("s_mov_b32 s33, s32", writes=[("s", 33)]))
        e(raw("s_mov_b32 s34, s32", writes=[("s", 34)]))
        e(raw(f"s_mov_b32 m0, s{sM0K + 0}", writes=[("m0", 0)]))
        e(nop(0))
        for t in range(4):
            e(dma(V(DMAK + t), SRD_K, sKDMA, 1024 * t))
        e(raw("s_add_u32 s33, s33, %d" % TILE, writes=[("s", 33)]))
        qv = [V(72 + i) for i in range(4)]
        self.valu("v_lshrrev_b32", tmp2, 6, V(0))
        self.valu("v_lshlrev_b32", tmp2, 12, tmp2)
        for t in range(4):
            self.valu("v_sub_u32", qv[t], V(DMAK + t), tmp2)
        e(raw("s_lshl_b32 s45, s28, 14", writes=[("s", 45)]))
        e(raw("s_add_u32 s45, s45, %d" % LDS_Q, writes=[("s", 45)]))
        for pg in range(4):
            e(raw("s_add_u32 s46, s45, %d" % (pg * 4096), writes=[("s", 46)]))
            e(raw("s_mov_b32 m0, s46", writes=[("m0", 0)]))
            e(raw("s_add_u32 s47, s31, %d" % (pg * 4096), writes=[("s", 47)]))
            for t in range(4):
                e(dma(qv[t], SRD_Q, sT2, 1024 * t))
        for ks in range(8):
            self.valu("v_add_u32", V(64 + ks), S(45), V(KADDR + ks))
        for i in range(128):
            e(mk("v_accvgpr_write_b32", [A(OB + i)], [0]))
        self.valu("v_mov_b32", V(LSUM), 0)
        self.valu("v_mov_b32", V(LSUM + 1), 0)
        e(raw("s_mov_b32 s35, s32", writes=[("s", 35)]))
        ts = [V(T + i) for i in range(9)]
        k = 0
        self.dma_tile("K", 1)
        self.stamp(0)
        e(wait(vm=4))
        self.stamp(1)
        for f in range(16):
            qh, ks = f >> 3, f & 7
            e(dsr128(V(4 * f, 4), V(64 + ks), qh * 8192))
        for f in range(16):
            e(wait(lgkm=15 - f))
            if f == 8:
                self.dma_tile("V", 0)
            for d in range(4):
                src = V(4 * f + d)
                t0, t1, t2 = ts[k], ts[k + 1], ts[k + 2]
                k = (k + 3) % 9
                self.valu("v_lshlrev_b32", t0, 16, src)
                self.valu("v_and_b32", t1, "0xffff0000", src)
                self.valu("v_mul_f32", t0, sC, t0)
                self.valu("v_mul_f32", t1, sC, t1)
                self.valu("v_cvt_pk_bf16_f32", t2, t0, t1)
                e(mk("v_accvgpr_write_b32", [A(QB + 4 * f + d)], [t2]))
        self.stamp(2)
        e(raw("s_barrier", "barrier"))
        self.stamp(3)
        self.lq = []
        self.k_prefetch(0)
        self.dma_tile("K", 2)
        self.dma_tile("V", 1)
        self.iteration(4, "qk0")
        self.stamp(4)
        e(wait(vm=12))
        e(raw("s_barrier", "barrier"))
        self.stamp(5)
        e(raw(f"s_mov_b32 m0, s{sM0K + 0}", writes=[("m0", 0)]))
        e(nop(0))
        for t in range(4):
            e(dma(V(DMAK + t), SRD_K, sKDMA, 1024 * t))
        e(raw("s_add_u32 s33, s33, %d" % TILE, writes=[("s", 33)]))
        self.k_prefetch(1)
        self.pad(8)
        self.init_max(S_BASE[0])
        self.stamp(6)
        self.iteration(5, "qksm")
        self.lsum_update()

    def init_max(self, sb):
        dl = [V(T + 0), V(T + 1)]
        tA, tB = V(T + 2), V(T + 3)
        for qh in range(2):
            regs = [V(sb + (kh * 2 + qh) * 16 + r) for kh in range(2) for r in range(16)]
            m = dl[qh]
            self.valu("v_max3_f32", m, regs[0], regs[1], regs[2])
            i = 3
            while i + 1 < 32:
                self.valu("v_max3_f32", m, m, regs[i], regs[i + 1])
                i += 2
            self.valu("v_max_f32", m, m, regs[31])
            self.valu("v_mov_b32", tA, m)
            self.valu("v_mov_b32", tB, m)
            self.pad(2)
            self.e(permswap(tA, tB))
            self.pad(2)
            self.valu("v_max_f32", m, tA, tB)
        for qh in range(2):
            for r in range(16):
                self.valu("v_sub_f32", V(NEGM + 16 * qh + r), 0, dl[qh])
        for kh in range(2):
            for qh in range(2):
                for r in range(16):
                    x = V(sb + (kh * 2 + qh) * 16 + r)
                    self.valu("v_sub_f32", x, x, dl[qh])

    def dma_tile(self, which, slot):
        e = self.e
        if which == "K":
            e(raw(f"s_mov_b32 m0, s{sM0K + slot}", writes=[("m0", 0)]))
            e(nop(0))
            for t in range(4):
                e(dma(V(DMAK + t), SRD_K, sKDMA, 1024 * t))
            e(raw("s_add_u32 s33, s33, %d" % TILE, writes=[("s", 33)]))
        else:
            e(raw(f"s_mov_b32 m0, s{sM0V + slot}", writes=[("m0", 0)]))
            e(nop(0))
            for t in range(4):
                e(dma(V(DMAV), SRD_V, sVDMA, 1024 * t))
            e(raw("s_add_u32 s34, s34, %d" % TILE, writes=[("s", 34)]))

    def k_prefetch(self, slot):
        for f in range(4):
            self.e(dsr128(A(KF + 4 * (f % NKS), 4), V(KADDR + f), slot * TILE, tag=("K", f)))
            self.lq.append(("K", f))

    def slow_k_loads(self, soff):
        self.e(raw(f"s_add_u32 s46, {soff}, 8192", writes=[("s", 46)]))
        for f in range(16):
            kh, ks = f >> 3, f & 7
            self.e(bload(A(KF + 4 * f, 4), V(QOFF), SRD_K, soff if kh == 0 else sT1, 32 * ks))

    def slow_qk_mfma(self, sb, first):
        for f in range(16):
            kh, ks = f >> 3, f & 7
            for qh in range(2):
                D = V(sb + (kh * 2 + qh) * 16, 16)
                if ks == 0:
                    C = 0 if first else V(NEGM + 16 * qh, 16)
                else:
                    C = D
                self.e(mfma(D, A(KF + 4 * f, 4), A(QB + (qh * 8 + ks) * 4, 4), C))

    def slow_softmax(self, sb, pb, first, fix):
        dl = [V(T + 0), V(T + 1)]
        tA, tB = V(T + 2), V(T + 3)
        fq = [V(T + 4), V(T + 5)]
        for qh in range(2):
            regs = [V(sb + (kh * 2 + qh) * 16 + r) for kh in range(2) for r in range(16)]
            m = dl[qh]
            self.valu("v_max3_f32", m, regs[0], regs[1], regs[2])
            i = 3
            while i + 1 < 32:
                self.valu("v_max3_f32", m, m, regs[i], regs[i + 1])
                i += 2
            self.valu("v_max_f32", m, m, regs[31])
            self.valu("v_mov_b32", tA, m)
            self.valu("v_mov_b32", tB, m)
            self.pad(2)
            self.e(permswap(tA, tB))
            self.pad(2)
            self.valu("v_max_f32", m, tA, tB)
            if not first:
                self.valu("v_max_f32", m, 0, m)
        if not first:
            for qh in range(2):
                self.e(mk("v_exp_f32_e64", [fq[qh]], [Neg(dl[qh])]))
            self.pad(2)
            for qh in range(2):
                self.valu("v_mul_f32", V(LSUM + qh), V(LSUM + qh), fq[qh])
            tt = [V(T + 6), V(T + 7), V(T + 8), V(T + 9)]
            k = 0
            for db in range(4):
                for qh in range(2):
                    for r in range(16):
                        ar = A(OB + (db * 2 + qh) * 16 + r)
                        t = tt[k]
                        k = (k + 1) % 4
                        self.e(mk("v_accvgpr_read_b32", [t], [ar]))
                        self.pad(1)
                        self.valu("v_mul_f32", t, t, fq[qh])
                        self.pad(1)
                        self.e(mk("v_accvgpr_write_b32", [ar], [t]))
        for qh in range(2):
            for r in range(16):
                self.valu("v_sub_f32", V(NEGM + 16 * qh + r), V(NEGM + 16 * qh + r), dl[qh])
        for kh in range(2):
            for qh in range(2):
                for r in range(16):
                    x = V(sb + (kh * 2 + qh) * 16 + r)
                    self.valu("v_sub_f32", x, x, dl[qh])
        for kh in range(2):
            for qh in range(2):
                for r in range(16):
                    x = V(sb + (kh * 2 + qh) * 16 + r)
                    self.e(mk("v_exp_f32", [x], [x]))
        self.pad(1)
        for qh in range(2):
            regs = [V(sb + (kh * 2 + qh) * 16 + r) for kh in range(2) for r in range(16)]
            self.valu("v_add_f32", V(TSUM + qh), regs[0], regs[1])
            for x in regs[2:]:
                self.valu("v_add_f32", V(TSUM + qh), V(TSUM + qh), x)
        for kh in range(2):
            for qh in range(2):
                for r in range(0, 16, 2):
                    t = 2 * kh + (r >> 3)
                    d = V(pb + (t * 2 + qh) * 4 + ((r & 7) >> 1))
                    x0 = V(sb + (kh * 2 + qh) * 16 + r)
                    x1 = V(sb + (kh * 2 + qh) * 16 + r + 1)
                    self.valu("v_cvt_pk_bf16_f32", d, x0, x1)
        if fix is not None:
            for kh in range(2):
                for qh in range(2):
                    for r in range(16):
                        x = V(fix + (kh * 2 + qh) * 16 + r)
                        self.valu("v_sub_f32", x, x, dl[qh])

    def softmax_fifo(self, Ss, Pw):
        ops = []
        nel = 64

        def reg(e):
            kh, r, qh = e >> 5, (e >> 1) & 15, e & 1
            return V(Ss + (kh * 2 + qh) * 16 + r)

        cnt = [0, 0]

        def add_op(e):
            qh = e & 1
            if cnt[qh] == 0:
                cnt[qh] = 1
                return
            if cnt[qh] == 1:
                first = reg(e - 2)
                ops.append(mk("v_add_f32", [V(TSUM + qh)], [first, reg(e)]))
            else:
                ops.append(mk("v_add_f32", [V(TSUM + qh)], [V(TSUM + qh), reg(e)]))
            cnt[qh] += 1
            kh, r = e >> 5, (e >> 1) & 15
            if r & 1:
                t = 2 * kh + (r >> 3)
                d = V(Pw + (t * 2 + qh) * 4 + ((r & 7) >> 1))
                ops.append(mk("v_cvt_pk_bf16_f32", [d], [reg(e - 2), reg(e)]))

        for e in range(nel):
            ops.append(mk("v_exp_f32", [reg(e)], [reg(e)]))
            if e >= 1:
                add_op(e - 1)
        add_op(nel - 1)
        return ops

    def iteration(self, im6, kind):
        o = self.o
        par = im6 & 1
        Sq = S_BASE[par]
        Ss = S_BASE[par ^ 1]
        Pw = P_BASE[par ^ 1]
        Pr = P_BASE[par]
        sK = (im6 + 2) % 3
        sV = im6 % 3
        sKn = (im6 + 3) % 3
        dK = (im6 + 1) % 3
        dV = (im6 + 2) % 3
        do_qk = kind in ("full", "qk0", "qksm")
        do_sm = kind in ("full", "noqk", "qksm")
        do_pv = kind in ("full", "noqk", "last")
        mf = []
        if do_qk:
            for n in range(32):
                kh, ks, qh, f = n >> 4, (n >> 1) & 7, n & 1, n >> 1
                D = V(Sq + (kh * 2 + qh) * 16, 16)
                C = (0 if kind == "qk0" else V(NEGM + 16 * qh, 16)) if ks == 0 else D
                need = [("K", f), ("K", f + 1)] if n % 4 == 0 else []
                mf.append((mfma(D, A(KF + 4 * (f % NKS), 4), A(QB + (qh * 8 + ks) * 4, 4), C), need))
        pvb = len(mf)
        for j in range(32 if do_pv else 0):
            g, qh = j >> 1, j & 1
            t, db = g >> 2, g & 3
            D = A(OB + (db * 2 + qh) * 16, 16)
            need = [("V", g), ("V", g + 1)] if j % 4 == 0 else []
            mf.append((mfma(D, A(VF + 4 * (g % NVS), 4), V(Pr + (t * 2 + qh) * 4, 4), D), need))
        nm = len(mf)
        fixed = {}

        def put(gap, ins):
            fixed.setdefault(max(gap, -1), []).append(ins)

        if do_qk:
            for f in range(4, 16):
                kh, ks = f >> 3, f & 7
                put(2 * f - o["k_la"], dsr128(A(KF + 4 * (f % NKS), 4), V(KADDR + ks), sK * TILE + kh * 8192, tag=("K", f)))
        for g in range(16 if do_pv else 0):
            t, db = g >> 2, g & 3
            base = pvb + 2 * g - o["v_la"]
            put(base, dsrtr(A(VF + 4 * (g % NVS), 2), V(VADDR + db), sV * TILE + t * 4096, tag=("V", g)))
            put(base + 1, dsrtr(A(VF + 4 * (g % NVS) + 2, 2), V(VADDR + db), sV * TILE + t * 4096 + 2048, tag=("V", g)))
        bar_gap = nm - 8 if kind not in ("last", "qk0") else None
        if kind == "full":
            put(1, raw(f"s_mov_b32 m0, s{sM0K + dK}", writes=[("m0", 0)]))
            for t in range(4):
                put(2 + 2 * t, dma(V(DMAK + t), SRD_K, sKDMA, 1024 * t))
            put(9, raw(f"s_mov_b32 m0, s{sM0V + dV}", writes=[("m0", 0)]))
            for t in range(4):
                put(10 + 2 * t, dma(V(DMAV), SRD_V, sVDMA, 1024 * t))
            put(18, raw("s_add_u32 s33, s33, %d" % TILE, writes=[("s", 33)]))
            put(19, raw("s_add_u32 s34, s34, %d" % TILE, writes=[("s", 34)]))
        fifo = self.softmax_fifo(Ss, Pw) if do_sm else []
        check_done = (not do_sm) or kind == "qksm"

        for ins in fixed.get(-1, []):
            self.emit_ds(ins)
        for n, (m, need) in enumerate(mf):
            self.need(need)
            self.e(m)
            budget = o["budget"]
            nxt_need = mf[n + 1][1] if n + 1 < nm else []
            if any(t in self.lq for t in nxt_need):
                budget -= 4
            for ins in fixed.get(n, []):
                if ins.kind == "ds":
                    self.emit_ds(ins)
                else:
                    self.e(ins)
                budget -= ins.cost
            if n == bar_gap:
                self.e(wait(vm={"full": 8, "qksm": 4}.get(kind, 0), lgkm=0))
                self.lq = []
                self.e(raw("s_barrier", "barrier"))
                budget -= 8
                if kind == "full":
                    pass
            if kind in ("full", "qksm") and bar_gap is not None and bar_gap < n <= bar_gap + 4:
                f = n - bar_gap - 1
                self.e(dsr128(A(KF + 4 * (f % NKS), 4), V(KADDR + f), sKn * TILE, tag=("K", f)))
                self.lq.append(("Kn", f))
                budget -= 4
            while fifo and fifo[0].cost <= budget:
                ins = fifo.pop(0)
                self.e(ins)
                budget -= ins.cost
            if not fifo and not check_done and budget >= 8:
                self.valu("v_max_f32", V(T), V(TSUM), V(TSUM + 1))
                self.valu("v_cmp_lt_f32", "vcc", sTHR, V(T))
                check_done = True
        if kind == "full":
            assert not fifo, "softmax ops did not fit: %d left" % len(fifo)
        while fifo:
            self.e(fifo.pop(0))
        if not check_done:
            self.valu("v_max_f32", V(T), V(TSUM), V(TSUM + 1))
            self.valu("v_cmp_lt_f32", "vcc", sTHR, V(T))
        self.lq = [("K", t[1]) if t[0] == "Kn" else t for t in self.lq]

    def emit_ds(self, ins):
        self.e(ins)
        self.lq.append(ins.tag)

    def need(self, tags):
        idx = -1
        for t in tags:
            for k in range(len(self.lq) - 1, -1, -1):
                if self.lq[k] == t:
                    idx = max(idx, k)
                    break
        if idx >= 0:
            n = len(self.lq) - 1 - idx
            assert n <= 15
            self.e(wait(lgkm=n))
            self.lq = self.lq[idx + 1:]

    def rare(self, name, ret, im6, kind):
        par = im6 & 1
        Ss = S_BASE[par ^ 1]
        Pw = P_BASE[par ^ 1]
        Sq = S_BASE[par] if kind == "full" else None
        sKn = (im6 + 3) % 3
        self.e(label(name))
        self.pad(20)
        self.e(wait(vm=0, lgkm=0))
        self.slow_k_loads(sKSOFT)
        self.e(wait(vm=0))
        self.pad(2)
        self.slow_qk_mfma(Ss, first=False)
        self.pad(20)
        self.slow_softmax(Ss, Pw, first=False, fix=Sq)
        self.pad(8)
        if kind == "full":
            save = self.lq
            self.lq = []
            self.k_prefetch(sKn)
            self.lq = save
        self.e(raw(f"s_branch {ret}", "branch"))

    def epilogue(self):
        e = self.e
        self.pad(20)
        inv = [V(T + 0), V(T + 1)]
        tA, tB = V(T + 2), V(T + 3)
        for qh in range(2):
            self.valu("v_mov_b32", tA, V(LSUM + qh))
            self.valu("v_mov_b32", tB, V(LSUM + qh))
            self.pad(2)
            e(permswap(tA, tB))
            self.pad(2)
            self.valu("v_add_f32", tA, tA, tB)
            self.e(mk("v_rcp_f32", [inv[qh]], [tA]))
        self.pad(2)
        k = 0
        for qh in range(2):
            so = sQROW if qh == 0 else sQROW1
            for db in range(4):
                for gp in range(2):
                    base = (k % 4) * 16
                    k += 1
                    tr = [V(base + i) for i in range(8)]
                    outr = V(base + 8, 4)
                    for i in range(8):
                        e(mk("v_accvgpr_read_b32", [tr[i]], [A(OB + (db * 2 + qh) * 16 + 8 * gp + i)]))
                    self.pad(1)
                    for i in range(8):
                        self.valu("v_mul_f32", tr[i], tr[i], inv[qh])
                    for i in range(4):
                        self.valu("v_cvt_pk_bf16_f32", outr.sub(i), tr[2 * i], tr[2 * i + 1])
                    self.pad(2)
                    e(permswap(outr.sub(0), outr.sub(2)))
                    e(permswap(outr.sub(1), outr.sub(3)))
                    self.pad(1)
                    e(bstore(outr, V(QOFF), SRD_O, so, 64 * db + 32 * gp))

    def build(self):
        self.prologue()
        e = self.e
        e(raw("s_mov_b32 s42, 0", writes=[("s", 42)]))
        if self.o.get("stamps"):
            e(raw("s_memtime s[52:53]", "smem", writes=S(52, 2).regs()))
            e(wait(lgkm=0))
        e(label("L_loop"))
        loop_lq = list(self.lq)
        rares = []
        for im6 in range(6):
            self.iteration(im6, "full")
            e(raw(f"s_cbranch_vccnz L_rare{im6}", "branch", reads=[("vcc", 0)]))
            e(label(f"L_ret{im6}"))
            rares.append((f"L_rare{im6}", f"L_ret{im6}", im6, "full", list(self.lq)))
            self.lsum_update()
        assert self.lq == loop_lq, (self.lq, loop_lq)
        e(raw("s_add_u32 s42, s42, 1", writes=[("s", 42)]))
        e(raw("s_cmp_lt_u32 s42, 5"))
        e(raw("s_cbranch_scc1 L_loop", "branch"))
        if self.o.get("stamps"):
            e(raw("s_memtime s[54:55]", "smem", writes=S(54, 2).regs()))
            e(wait(lgkm=0))
            self.lq = []
        self.iteration(0, "noqk")
        e(raw("s_cbranch_vccnz L_rareT", "branch", reads=[("vcc", 0)]))
        e(label("L_retT"))
        rares.append(("L_rareT", "L_retT", 0, "noqk", list(self.lq)))
        self.lsum_update()
        self.iteration(1, "last")
        self.epilogue()
        if self.o.get("stamps"):
            e(wait(vm=0))
            e(raw("s_memtime s[56:57]", "smem", writes=S(56, 2).regs()))
            e(raw("s_memrealtime s[60:61]", "smem", writes=S(60, 2).regs()))
            e(wait(lgkm=0))
            e(raw("s_lshl_b32 s64, s2, 2", writes=[("s", 64)]))
            e(raw("s_add_u32 s64, s64, s28", writes=[("s", 64)]))
            e(raw("s_lshl_b32 s64, s64, 6", writes=[("s", 64)]))
            self.valu("v_mov_b32", V(250), S(64))
            for i, sr in enumerate((50, 51, 52, 53, 54, 55, 56, 57, 58, 59, 60, 61)):
                self.valu("v_mov_b32", V(i), S(sr))
            e(raw("s_mov_b64 exec, 1"))
            e(raw("global_store_dwordx4 v250, v[0:3], s[62:63]", "vmemst"))
            e(raw("global_store_dwordx4 v250, v[4:7], s[62:63] offset:16", "vmemst"))
            e(raw("global_store_dwordx4 v250, v[8:11], s[62:63] offset:32", "vmemst"))
            e(wait(vm=0))
            e(raw("s_lshl_b32 s64, s2, 2", writes=[("s", 64)]))
            e(raw("s_add_u32 s64, s64, s28", writes=[("s", 64)]))
            e(raw("s_lshl_b32 s64, s64, 7", writes=[("s", 64)]))
            e(raw("s_add_u32 s64, s64, 0x100000", writes=[("s", 64)]))
            self.valu("v_mov_b32", V(250), S(64))
            for i in range(16):
                self.valu("v_mov_b32", V(i), S(66 + i))
            for i in range(4):
                e(raw(f"global_store_dwordx4 v250, v[{4 * i}:{4 * i + 3}], s[62:63] offset:{16 * i}", "vmemst"))
            e(wait(vm=0))
        e(label("L_end"))
        e(raw("s_endpgm", "branch"))
        main_lq = self.lq
        for name, ret, im6, kind, lq in rares:
            self.lq = lq
            self.rare(name, ret, im6, kind)
        self.lq = main_lq

    def lsum_update(self):
        self.valu("v_add_f32", V(LSUM), V(LSUM), V(TSUM))
        self.valu("v_add_f32", V(LSUM + 1), V(LSUM + 1), V(TSUM + 1))
        self.e(raw("s_add_u32 s35, s35, %d" % TILE, writes=[("s", 35)]))

    def text(self):
        out = []
        for ins in self.seq:
            if ins.kind == "label":
                out.append(ins.text)
            else:
                out.append("    " + ins.text)
        return "\n".join(out)


def float_bits(x):
    import struct

    return struct.unpack("<I", struct.pack("<f", x))[0]


HEADER = """; Kernarg layout for this problem (48 bytes, ptrs only, base s[0:1]):
;   offset  24: d_out     shape=(1, 32, 2048, 128) dtype=bfloat16 (2 bytes/elem)
; grid=ceil(out_elems/256), lds=0). Harness parses it; keep it on one line.
; @launch grid=(256,1,1) block=(256,1,1) lds=163840
.amdgcn_target "amdgcn-amd-amdhsa--gfx950"
.text
.globl standalone__gqa_softmax__prompt_kernel
.p2align 8
.type standalone__gqa_softmax__prompt_kernel,@function
standalone__gqa_softmax__prompt_kernel:
"""

FOOTER = """
.section .rodata,"a"
.p2align 6
.amdhsa_kernel standalone__gqa_softmax__prompt_kernel
  .amdhsa_next_free_vgpr 512
  .amdhsa_next_free_sgpr 96
  .amdhsa_accum_offset 256
  .amdhsa_group_segment_fixed_size 0
  .amdhsa_kernarg_size 48
  .amdhsa_user_sgpr_count 2
  .amdhsa_user_sgpr_kernarg_segment_ptr 1
  .amdhsa_system_sgpr_workgroup_id_x 1
.end_amdhsa_kernel
"""


def main():
    opts = dict(k_la=7, v_la=11, budget=24)
    out = "cdna_kernels/%s.s" % NAME
    for a in sys.argv[1:]:
        if "=" in a:
            k, v = a.split("=")
            if k == "out":
                out = v
            else:
                opts[k] = int(v)
    g = Gen(opts)
    g.build()
    body = g.text()
    open(out, "w").write(HEADER + body + "\n" + FOOTER)
    n = sum(1 for i in g.seq if i.kind != "label")
    print("instructions:", n, "->", out)
    return g


if __name__ == "__main__":
    main()
```
